```python
import torch

def _softmax(x, axis=-1):
    return torch.softmax(x, dim=axis)
def _gelu(x):
    return torch.nn.functional.gelu(x, approximate="tanh")
def _silu(x):
    return torch.nn.functional.silu(x)
def _sigmoid(x):
    return torch.sigmoid(x)
def _layernorm(x, axis=-1, eps=1e-5):
    m = x.mean(dim=axis, keepdim=True)
    v = x.var(dim=axis, keepdim=True, unbiased=False)
    return (x - m) / torch.sqrt(v + eps)
def _scatter_add(tgt, idx, src, axis=0):
    return tgt.clone().index_add_(axis, idx, src)
def _segment_sum(src, seg, n):
    out = torch.zeros((n,) + src.shape[1:], dtype=src.dtype)
    return out.index_add_(0, seg, src)
def _pad(x, pw):
    flat = tuple(v for pair in reversed(pw) for v in pair)
    return torch.nn.functional.pad(x, flat)

kernel_name = 'concat_heads__gqa_block_cached__mha_block_cached__near_ridge'

def setup_inputs():

    _w = (lambda a: (lambda t: t.to(torch.bfloat16) if t.is_floating_point() else t)(torch.as_tensor(a)))
    def _A_setup():
        B, Sq, D = 8, 96, 640
        Hq, Hkv, Sk, Dh = 32, 32, 1024, 128
        assert Hq % Hkv == 0, (Hq, Hkv)
        return {
            "x": _w((lambda *s: torch.randn(*s, dtype=torch.bfloat16) * 0.8)(B, Sq, D)),
            "k_cache": _w((lambda *s: torch.randn(*s, dtype=torch.bfloat16) * 0.8)(B, Hkv, Sk, Dh)),
            "v_cache": _w((lambda *s: torch.randn(*s, dtype=torch.bfloat16) * 0.05)(B, Hkv, Sk, Dh)),
            "wq": _w((lambda *s: torch.randn(*s, dtype=torch.bfloat16) * 0.8)(D, Hq * Dh) * (D ** -0.5)),
            "wo": _w((lambda *s: torch.randn(*s, dtype=torch.bfloat16) * 0.05)(Hq * Dh, D) * ((Hq * Dh) ** -0.5)),
        }
    _A_in = _A_setup()

    def _B_setup():
        B, Sq, D = 8, 96, 640
        H, Sk, Dh = 32, 1024, 128
        return {
            "x": _w((lambda *s: torch.randn(*s, dtype=torch.bfloat16) * 0.8)(B, Sq, D)),
            "k_cache": _w((lambda *s: torch.randn(*s, dtype=torch.bfloat16) * 0.8)(B, H, Sk, Dh)),
            "v_cache": _w((lambda *s: torch.randn(*s, dtype=torch.bfloat16) * 0.05)(B, H, Sk, Dh)),
            "wq": _w((lambda *s: torch.randn(*s, dtype=torch.bfloat16) * 0.8)(D, H * Dh) * (D ** -0.5)),
            "wo": _w((lambda *s: torch.randn(*s, dtype=torch.bfloat16) * 0.05)(H * Dh, D) * ((H * Dh) ** -0.5)),
        }
    _B_in = _B_setup()

    return {
        "A_x": _A_in["x"],
        "A_k_cache": _A_in["k_cache"],
        "A_v_cache": _A_in["v_cache"],
        "A_wq": _A_in["wq"],
        "A_wo": _A_in["wo"],
        "B_x": _B_in["x"],
        "B_k_cache": _B_in["k_cache"],
        "B_v_cache": _B_in["v_cache"],
        "B_wq": _B_in["wq"],
        "B_wo": _B_in["wo"],
    }

def reference(A_x, A_k_cache, A_v_cache, A_wq, A_wo, B_x, B_k_cache, B_v_cache, B_wq, B_wo):
    def _A_ref(x, k_cache, v_cache, wq, wo):
        B, Sq, D = x.shape
        Hq, Dh = 32, 128
        Hkv = k_cache.shape[1]
        rep = Hq // Hkv
        q = (lambda x, *d: x.permute(*d))((x @ wq).reshape(B, Sq, Hq, Dh), 0, 2, 1, 3)
        k = (lambda x, n, axis: torch.repeat_interleave(x, n, dim=axis))(k_cache, rep, axis=1)
        v = (lambda x, n, axis: torch.repeat_interleave(x, n, dim=axis))(v_cache, rep, axis=1)
        scores = torch.einsum("bhqd,bhkd->bhqk", q, k) * (Dh ** -0.5)
        p = _softmax(scores, axis=-1)
        o = torch.einsum("bhqk,bhkd->bhqd", p, v)
        return (lambda x, *d: x.permute(*d))(o, 0, 2, 1, 3).reshape(B, Sq, Hq * Dh) @ wo

    def _B_ref(x, k_cache, v_cache, wq, wo):
        B, Sq, D = x.shape
        H, Dh = 32, 128
        q = (lambda x, *d: x.permute(*d))((x @ wq).reshape(B, Sq, H, Dh), 0, 2, 1, 3)
        scores = torch.einsum("bhqd,bhkd->bhqk", q, k_cache) * (Dh ** -0.5)
        p = _softmax(scores, axis=-1)
        o = torch.einsum("bhqk,bhkd->bhqd", p, v_cache)
        return (lambda x, *d: x.permute(*d))(o, 0, 2, 1, 3).reshape(B, Sq, H * Dh) @ wo

    a = _A_ref(A_x, A_k_cache, A_v_cache, A_wq, A_wo)
    b = _B_ref(B_x, B_k_cache, B_v_cache, B_wq, B_wo)
    return torch.concatenate([a, b], axis=-1)
```

```python
import re

def expand(op):
    op = op.strip()
    op = op.lstrip('-')
    m = re.fullmatch(r'abs\((.*)\)', op)
    if m: op = m.group(1)
    m = re.fullmatch(r'([vas])\[(\d+):(\d+)\]', op)
    if m:
        return {(m.group(1), i) for i in range(int(m.group(2)), int(m.group(3)) + 1)}
    m = re.fullmatch(r'([vas])(\d+)', op)
    if m:
        return {(m.group(1), int(m.group(2)))}
    if op in ('vcc', 'm0', 'exec', 'scc'):
        return {(op, 0)}
    return set()

TRANS = ('v_exp_f32', 'v_log_f32', 'v_rcp_f32', 'v_rsq_f32', 'v_sqrt_f32')

class Ins:
    def __init__(self, text):
        self.text = text
        t = text.split(';')[0].strip()
        parts = t.split(None, 1)
        self.op = parts[0]
        rest = parts[1] if len(parts) > 1 else ''
        ops = [o.strip() for o in rest.split(',')] if rest else []
        if ops:
            last = ops[-1].split()
            self.mods = last[1:]
            ops[-1] = last[0] if last else ''
        else:
            self.mods = []
        self.ops = ops
        self.kind = None
        self.rd = set(); self.wr = set()
        self.A = self.B = self.C = self.D = set()
        op = self.op
        E = expand
        if op.startswith('v_mfma'):
            self.kind = 'mfma'
            self.D, self.A, self.B, self.C = E(ops[0]), E(ops[1]), E(ops[2]), E(ops[3])
            self.rd = self.A | self.B | self.C
            self.wr = self.D
            self.passes = 8 if '32x32' in op else 4
        elif op.startswith('v_'):
            self.kind = 'valu'
            self.wr = E(ops[0])
            for o in ops[1:]:
                self.rd |= E(o)
            if op.startswith(('v_fmac', 'v_dot2c', 'v_pk_fmac')):
                self.rd |= self.wr
            if op.startswith('v_permlane32_swap') or op.startswith('v_permlane16_swap'):
                self.rd = E(ops[0]) | E(ops[1]); self.wr = set(self.rd)
            if op.startswith(('v_add_co', 'v_sub_co', 'v_addc_co')):
                self.wr |= E(ops[1]); self.rd = set()
                for o in ops[2:]: self.rd |= E(o)
        elif op.startswith('ds_read'):
            self.kind = 'ds'; self.wr = E(ops[0]); self.rd = E(ops[1])
        elif op.startswith('ds_write'):
            self.kind = 'ds'
            for o in ops: self.rd |= E(o)
        elif op.startswith('buffer_load') and 'lds' in self.mods:
            self.kind = 'vmem'; self.dma = True
            for o in ops: self.rd |= E(o)
            self.rd |= {('m0', 0)}
        elif op.startswith(('buffer_load', 'global_load')):
            self.kind = 'vmem'; self.wr = E(ops[0])
            for o in ops[1:]: self.rd |= E(o)
        elif op.startswith(('buffer_store', 'global_store', 'buffer_atomic', 'global_atomic')):
            self.kind = 'vmem'
            for o in ops: self.rd |= E(o)
            self.store = True
        elif op.startswith(('buffer_', 'global_')):
            self.kind = 'vmem'
        elif op.startswith('s_'):
            self.kind = 'salu'
            if ops and not op.startswith(('s_cmp', 's_cbranch', 's_branch', 's_waitcnt', 's_nop', 's_barrier', 's_sleep', 's_setprio', 's_bitcmp')):
                self.wr = E(ops[0])
                for o in ops[1:]: self.rd |= E(o)
            else:
                for o in ops: self.rd |= E(o)
        else:
            raise ValueError('unknown instr ' + text)
    def states(self):
        if self.op == 's_nop':
            return int(self.ops[0], 0) + 1
        return 1

def vg(s):
    return {r for r in s if r[0] in 'va'}
def sg(s):
    return {r for r in s if r[0] in ('s', 'vcc')}

def need(p, c):
    n = 0
    if p.kind == 'valu':
        w = vg(p.wr)
        if c.kind == 'mfma' and (w & c.rd): n = max(n, 2)
        if c.kind == 'valu':
            if p.op.startswith(TRANS) and not c.op.startswith(TRANS) and (w & c.rd): n = max(n, 1)
            if p.op.startswith(TRANS) and (w & c.rd): n = max(n, 1)
            if c.op.startswith('v_permlane') and (w & c.rd): n = max(n, 2)
            if c.op.startswith(('v_readfirstlane', 'v_readlane')) and (w & c.rd): n = max(n, 1)
            if 'dpp' in c.text or 'row_' in c.text or 'quad_perm' in c.text:
                if w & c.rd: n = max(n, 2)
            if sg(p.wr) & c.rd: n = max(n, 2)
        if c.kind == 'vmem' and (sg(p.wr) & c.rd): n = max(n, 5)
        if c.kind == 'salu' and (sg(p.wr) & c.rd) and not c.op.startswith('s_cbranch'): n = max(n, 1)
    if p.kind == 'mfma':
        big = {8: 12, 4: 8}[p.passes]
        if c.kind == 'mfma':
            if p.D & (c.A | c.B): n = max(n, big)
            if p.D & c.C and not (p.D == c.C and p.passes == c.passes): n = max(n, big - 2)
            if p.D & c.D and not (p.D == c.C): n = max(n, big - 2)
        elif c.kind in ('valu', 'ds', 'vmem'):
            if p.D & (c.rd | c.wr): n = max(n, big)
            if c.kind == 'valu' and (p.C & c.wr): n = max(n, {8: 7, 4: 3}[p.passes])
            if c.kind != 'valu' and (p.C & c.wr): n = max(n, {8: 7, 4: 3}[p.passes])
    if p.kind == 'salu':
        if ('m0', 0) in p.wr and getattr(c, 'dma', False): n = max(n, 1)
    if p.kind == 'vmem' and getattr(p, 'store', False) and ('x4' in p.op or 'x3' in p.op):
        if vg(p.rd) & c.wr: n = max(n, 2)
    if p.kind == 'ds' and p.op.startswith('ds_write') and ('b128' in p.op or 'b96' in p.op):
        if c.kind == 'valu' and vg(p.rd) & c.wr: n = max(n, 1)
    return n

def check_seq(texts, name=''):
    ins = [Ins(t) for t in texts]
    bad = 0
    for j, c in enumerate(ins):
        d = 0
        i = j - 1
        while i >= 0 and d < 22:
            p = ins[i]
            n = need(p, c)
            if n > d:
                print(f'HAZARD[{name}] need {n} have {d}: [{i}] {p.text}  ->  [{j}] {c.text}')
                bad += 1
            d += p.states()
            i -= 1
    return bad

def cost(t):
    op = t.split()[0]
    if op.startswith(TRANS): return 2
    if op.startswith('s_nop'): return int(t.split()[1], 0) + 1
    if op.startswith('buffer_load'): return 3
    if op.endswith(':'): return 0
    if op.startswith('s_'): return 0.5
    return 1

def spread(gaps, stream, g0, g1):
    tot = sum(cost(t) for t in stream)
    n = g1 - g0 + 1
    acc = 0.0
    for t in stream:
        g = g0 + min(n - 1, int(acc * n / tot + 1e-9)) if tot > 0 else g0
        gaps[g].append(t)
        acc += cost(t)

def weave(mfmas, gaps, pre=()):
    out = list(pre)
    for i, m in enumerate(mfmas):
        out.append(m)
        out.extend(gaps[i])
    return out

def is_label(t):
    return t.rstrip().endswith(':')

def code_only(lines):
    return [t for t in lines if not is_label(t) and not t.startswith(';') and not t.startswith('.')]
```

```python
import sys, struct, math
sys.path.insert(0, 'gen')
from asmlib import *

NAME = 'concat_heads__gqa_block_cached__mha_block_cached__near_ridge'
def f32(x): return '0x%08x' % struct.unpack('<I', struct.pack('<f', x))[0]
CSCALE = f32(128 ** -0.5 * math.log2(math.e))

OPT = dict(kvflag='', early=8, per=4, stamps=0, rot=0)
for a in sys.argv[2:]:
    k, v = a.split('=')
    OPT[k] = v if not v.lstrip('-').isdigit() else int(v)
KVF = (' ' + OPT['kvflag']) if OPT['kvflag'] else ''

def R(f, a, n=1):
    return f'{f}{a}' if n == 1 else f'{f}[{a}:{a+n-1}]'
V = lambda a, n=1: R('v', a, n)
A = lambda a, n=1: R('a', a, n)
S = lambda a, n=1: R('s', a, n)
MF = 'v_mfma_f32_32x32x16_bf16'

sK, sV, sW, sX, sO = 4, 8, 12, 16, 20
sWv, sBr, sH, sBp, sT, sSo, sSo2, sM0K, sW8, sTmp, sTmp2 = 24, 25, 26, 27, 28, 29, 30, 31, 32, 33, 34
sWb, sXb, sWm, sXm, sThr, sOb, sQw, sRot = 35, 36, 37, 38, 39, 56, 57, 58
sDbg = 60
sSt = 64
vL16, vKb, vVb, vOffK, vOffV = 0, 1, 2, 3, 7
vL, vTs, vAd, vE, vP, vS, vN, vKf, vVf, vQ2 = 8, 11, 12, 16, 24, 48, 96, 144, 176, 208
vOffW, vOffX, vWA, vXA = 240, 241, 243, 247
vStat = 255
def Qreg(qb, s):
    return A(192 + qb * 32 + 4 * s, 4) if qb < 2 else V(vQ2 + 4 * s, 4)
def Oacc(a, qb): return (a * 3 + qb) * 16
LDS_Q1, LDS_Q2, LDS_STAT, LDS_XR = 81920, 131072, 155648, 131072
SB = [0, 40960, 81920, 122880]

stamp_n = [0]
def stamp():
    if not OPT['stamps']: return []
    i = stamp_n[0]; stamp_n[0] += 1
    return [f's_memtime {S(sSt + 2 * i, 2)}']

def k1_prologue():
    L = [
        's_cmp_ge_u32 s2, 256', 's_cbranch_scc1 K1_END',
        's_load_dwordx8 s[40:47], s[0:1], 0', 's_load_dwordx8 s[48:55], s[0:1], 40',
        f's_load_dwordx2 {S(sO,2)}, s[0:1], 96',
    ]
    if OPT['stamps']:
        L += [f's_load_dwordx2 {S(sDbg,2)}, s[0:1], 88']
    L += stamp()
    L += [
        's_and_b32 s3, s2, 7', f's_lshr_b32 {S(sTmp)}, s2, 3', f's_lshr_b32 {S(sBr)}, s3, 2',
        's_and_b32 s3, s3, 3', 's_lshl_b32 s3, s3, 3', f's_and_b32 {S(sH)}, {S(sTmp)}, 7',
        f's_add_u32 {S(sH)}, {S(sH)}, s3', f's_lshr_b32 {S(sBp)}, {S(sTmp)}, 3',
        'v_lshrrev_b32 v20, 6, v0', 'v_and_b32 v21, 63, v0', 's_nop 0',
        f'v_readfirstlane_b32 {S(sWv)}, v20',
        'v_lshlrev_b32 v0, 4, v21',
        'v_lshrrev_b32 v22, 4, v21',
        'v_and_b32 v23, 15, v21',
        'v_xor_b32 v24, v23, v22', 'v_lshlrev_b32 v24, 4, v24', 'v_lshlrev_b32 v25, 8, v22',
        f'v_add_u32 {V(vOffK)}, v24, v25',
        f'v_xor_b32 {V(vOffK+1)}, 64, {V(vOffK)}', f'v_xor_b32 {V(vOffK+2)}, 0x80, {V(vOffK)}',
        f'v_xor_b32 {V(vOffK+3)}, 0xc0, {V(vOffK)}',
        'v_lshlrev_b32 v24, 2, v22', 'v_xor_b32 v24, v23, v24', 'v_lshlrev_b32 v24, 4, v24',
        f'v_add_u32 {V(vOffV)}, v24, v25', 'v_lshlrev_b32 v25, 13, v22', f'v_add_u32 {V(vOffW)}, v24, v25',
        'v_and_b32 v24, 7, v21', 'v_xor_b32 v24, v24, v22', 'v_lshlrev_b32 v24, 4, v24',
        'v_lshrrev_b32 v25, 3, v21', 'v_mul_u32_u24 v25, 0x500, v25', f'v_add_u32 {V(vOffX)}, v24, v25',
        f'v_xor_b32 {V(vOffX+1)}, 64, {V(vOffX)}',
        f's_lshl_b32 {S(sW8)}, {S(sWv)}, 13', f's_lshl_b32 {S(sM0K)}, {S(sWv)}, 15',
        f's_lshl_b32 {S(sWb)}, {S(sWv)}, 17', f's_lshl_b32 {S(sWm)}, {S(sWv)}, 12',
        f's_mul_i32 {S(sXm)}, {S(sWv)}, 6144', f's_add_u32 {S(sXm)}, {S(sXm)}, 16384',
        f's_lshr_b32 {S(sTmp)}, {S(sWv)}, 1', f's_mul_i32 {S(sXb)}, {S(sTmp)}, 491520',
        f's_and_b32 {S(sTmp2)}, {S(sWv)}, 1', f's_mul_i32 s3, {S(sTmp2)}, 61440', f's_add_u32 {S(sXb)}, {S(sXb)}, s3',
        f's_mov_b32 {S(sThr)}, {f32(256.0)}',
        f's_mul_i32 {S(sQw)}, {S(sTmp)}, {LDS_Q2 - LDS_Q1}', f's_lshl_b32 s3, {S(sTmp2)}, 12',
        f's_add_u32 {S(sQw)}, {S(sQw)}, s3', f's_add_u32 {S(sQw)}, {S(sQw)}, {LDS_Q1}',
        'v_lshrrev_b32 v26, 5, v21', 'v_and_b32 v27, 31, v21', 'v_bfe_u32 v28, v21, 2, 2',
        'v_and_b32 v29, 16, v21', 'v_lshlrev_b32 v29, 1, v29',
        'v_and_b32 v30, 1, v21', 'v_lshlrev_b32 v30, 4, v30', 'v_add_u32 v29, v29, v30',
        'v_and_b32 v30, 2, v21', 'v_lshlrev_b32 v30, 2, v30', 'v_add_u32 v29, v29, v30',
        'v_xor_b32 v30, v26, v23', 'v_lshlrev_b32 v30, 4, v30', 'v_lshlrev_b32 v31, 8, v27',
        'v_add_u32 v30, v30, v31', f'v_add_u32 {V(vKb)}, {S(sM0K)}, v30',
        'v_lshlrev_b32 v30, 2, v26', 'v_add_u32 v30, v30, v28', 'v_lshlrev_b32 v30, 8, v30',
        f'v_xor_b32 v31, {S(sWv)}, v28', 'v_lshlrev_b32 v31, 6, v31', 'v_add3_u32 v30, v30, v31, v29',
        f'v_add_u32 v30, {S(sM0K)}, v30', f'v_add_u32 {V(vVb)}, 0x2000, v30',
        'v_lshlrev_b32 v30, 3, v26', 'v_add_u32 v30, v30, v28', 'v_lshlrev_b32 v30, 8, v30',
        f's_lshl_b32 s3, {S(sTmp2)}, 1', 'v_xor_b32 v31, s3, v28', 'v_lshlrev_b32 v31, 6, v31',
        f'v_add3_u32 {V(vWA)}, v30, v31, v29', f'v_xor_b32 {V(vWA+1)}, 64, {V(vWA)}',
        f'v_add_u32 {V(vWA+2)}, {SB[2]}, {V(vWA)}', f'v_add_u32 {V(vWA+3)}, {SB[2]}, {V(vWA+1)}',
        f's_mul_i32 s3, {S(sTmp)}, 12288', 's_add_u32 s3, s3, 16384',
        'v_bfe_u32 v30, v21, 1, 3', 'v_xor_b32 v30, v30, v26', 'v_lshlrev_b32 v30, 4, v30',
        'v_lshlrev_b32 v31, 7, v27', f'v_add3_u32 {V(vXA)}, v30, v31, s3',
    ]
    for ks in range(1, 4):
        L += [f'v_xor_b32 {V(vXA+ks)}, {32*ks}, {V(vXA)}']
    for ks in range(4):
        L += [f'v_add_u32 {V(vXA+4+ks)}, {SB[2]}, {V(vXA+ks)}']
    L += [f'v_lshlrev_b32 {V(vStat)}, 3, v27', f'v_add_u32 {V(vStat)}, {LDS_STAT}, {V(vStat)}']
    L += [
        's_waitcnt lgkmcnt(0)',
        f's_cmp_eq_u32 {S(sBr)}, 0',
        's_cselect_b64 s[40:41], s[40:41], s[48:49]', 's_cselect_b64 s[42:43], s[42:43], s[50:51]',
        's_cselect_b64 s[44:45], s[44:45], s[52:53]', 's_cselect_b64 s[46:47], s[46:47], s[54:55]',
        f's_lshl_b32 s3, {S(sBp)}, 5', f's_add_u32 s3, s3, {S(sH)}', 's_lshl_b32 s3, s3, 18',
        f's_add_u32 {S(sK)}, s42, s3', f's_addc_u32 {S(sK+1)}, s43, 0', f's_and_b32 {S(sK+1)}, {S(sK+1)}, 0xffff',
        f's_sub_u32 {S(sK+2)}, 0x4000000, s3', f's_mov_b32 {S(sK+3)}, 0x20000',
        f's_add_u32 {S(sV)}, s44, s3', f's_addc_u32 {S(sV+1)}, s45, 0', f's_and_b32 {S(sV+1)}, {S(sV+1)}, 0xffff',
        f's_sub_u32 {S(sV+2)}, 0x4000000, s3', f's_mov_b32 {S(sV+3)}, 0x20000',
        f's_lshl_b32 s3, {S(sH)}, 8',
        f's_add_u32 {S(sW)}, s46, s3', f's_addc_u32 {S(sW+1)}, s47, 0', f's_and_b32 {S(sW+1)}, {S(sW+1)}, 0xffff',
        f's_sub_u32 {S(sW+2)}, 5242880, s3', f's_mov_b32 {S(sW+3)}, 0x20000',
        f's_mul_i32 s3, {S(sBp)}, 122880',
        f's_add_u32 {S(sX)}, s40, s3', f's_addc_u32 {S(sX+1)}, s41, 0', f's_and_b32 {S(sX+1)}, {S(sX+1)}, 0xffff',
        f's_sub_u32 {S(sX+2)}, 983040, s3', f's_mov_b32 {S(sX+3)}, 0x20000',
        f's_mul_i32 s3, {S(sBr)}, 6291456',
        f's_add_u32 {S(sO)}, {S(sO)}, s3', f's_addc_u32 {S(sO+1)}, {S(sO+1)}, 0', f's_and_b32 {S(sO+1)}, {S(sO+1)}, 0xffff',
        f's_mov_b32 {S(sO+2)}, 6291456', f's_mov_b32 {S(sO+3)}, 0x20000',
        f's_mul_i32 {S(sOb)}, {S(sBp)}, 768', f's_lshl_b32 s3, {S(sH)}, 3', f's_add_u32 {S(sOb)}, {S(sOb)}, s3',
        f's_lshl_b32 s3, {S(sWv)}, 1', f's_add_u32 {S(sOb)}, {S(sOb)}, s3', f's_lshl_b32 {S(sOb)}, {S(sOb)}, 10',
        f's_mov_b32 {S(sT)}, 0',
    ]
    if OPT['rot']:
        L += [f's_lshr_b32 {S(sRot)}, s2, 3', f's_and_b32 {S(sRot)}, {S(sRot)}, 7']
    else:
        L += [f's_mov_b32 {S(sRot)}, 0']
    if OPT['stamps']:
        L += [f's_and_b32 {S(sDbg+1)}, {S(sDbg+1)}, 0xffff', f's_mov_b32 {S(sDbg+2)}, 256', f's_mov_b32 {S(sDbg+3)}, 0x20000']
    return L

def stage_dma(j):
    sb = SB[j % 4]; G = []
    for i in range(4):
        G.append([f's_add_u32 m0, {S(sWm)}, {sb + 1024*i}', f's_add_u32 {S(sTmp)}, {S(sWb)}, {j*524288 + i*32768}',
                  f'buffer_load_dwordx4 {V(vOffW)}, {S(sW,4)}, {S(sTmp)} offen lds'])
    for i in range(6):
        G.append([f's_add_u32 m0, {S(sXm)}, {sb + 1024*i}', f's_add_u32 {S(sTmp)}, {S(sXb)}, {j*128 + i*10240}',
                  f'buffer_load_dwordx4 {V(vOffX + (i&1))}, {S(sX,4)}, {S(sTmp)} offen lds'])
    return G

def soff_calc(dst, tadd):
    return [f's_add_u32 {S(sTmp)}, {S(sT)}, {tadd}', f's_lshr_b32 {S(sTmp2)}, {S(sTmp)}, 3', f's_lshl_b32 {S(sTmp2)}, {S(sTmp2)}, 25',
            f's_add_u32 {S(sTmp)}, {S(sTmp)}, {S(sRot)}',
            f's_and_b32 {S(sTmp)}, {S(sTmp)}, 7', f's_lshl_b32 {S(sTmp)}, {S(sTmp)}, 15', f's_add_u32 {S(dst)}, {S(sTmp)}, {S(sTmp2)}',
            f's_add_u32 {S(dst)}, {S(dst)}, {S(sW8)}', f's_add_u32 {S(dst+1)}, {S(dst)}, 4096']

def kv_pre(n):
    p, i = n >> 3, n & 7
    so = 40 + 2 * (p >> 1) + (i >> 2)
    voff = vOffK + (i & 3) if p % 2 == 0 else vOffV
    srd = sK if p % 2 == 0 else sV
    return [f'buffer_load_dwordx4 {A(32*p + 4*i, 4)}, {V(voff)}, {S(srd,4)}, {S(so)} offen offset:{1024*(i&3)}{KVF}']

def spread_groups(gaps, groups, g0, g1):
    n = g1 - g0 + 1
    for k, g in enumerate(groups):
        gaps[g0 + (k * n) // len(groups)].extend(g)

def k1_qproj():
    L = []
    L += soff_calc(40, 0) + soff_calc(42, 1)
    seq = []
    for j in range(3):
        for g in stage_dma(j): L += g; seq.append(('st', j))
    n = 0
    for _ in range(OPT['early']):
        L += kv_pre(n); seq.append(('kv', n)); n += 1
    Wf = lambda ks, d: 144 + ks * 8 + d * 4
    Xf = lambda ks, qb: 176 + ks * 12 + qb * 4
    for j in range(10):
        last = max(i for i, t in enumerate(seq) if t == ('st', j))
        L += [f's_waitcnt vmcnt({len(seq) - 1 - last})', 's_barrier']
        b = j % 4; hi = b >> 1; off = (b & 1) * 40960
        def reads(ks):
            r = []
            for d in range(2):
                for wp in range(2):
                    r.append(f'ds_read_b64_tr_b16 {V(Wf(ks,d) + 2*wp, 2)}, {V(vWA + 2*hi + d)} offset:{off + 4096*ks + 1024*wp}')
            for qb in range(3):
                r.append(f'ds_read_b128 {V(Xf(ks,qb), 4)}, {V(vXA + 4*hi + ks)} offset:{off + 4096*qb}')
            return r
        L += reads(0) + reads(1)
        groups = []
        if j + 3 < 10:
            for g in stage_dma(j + 3): groups.append(g); seq.append(('st', j + 3))
        k = OPT['per'] if j + 3 < 10 else 32
        while k > 0 and n < 32:
            groups.append(kv_pre(n)); seq.append(('kv', n)); n += 1; k -= 1
        mf = []; gaps = [[] for _ in range(24)]
        for ks in range(4):
            for d in range(2):
                for qb in range(3):
                    acc = V(48 + (d * 3 + qb) * 16, 16)
                    c = '0' if (j == 0 and ks == 0) else acc
                    mf.append(f'{MF} {acc}, {V(Wf(ks,d),4)}, {V(Xf(ks,qb),4)}, {c}')
        spread(gaps, reads(2), 0, 4); spread(gaps, reads(3), 6, 10)
        gaps[5].append('s_waitcnt lgkmcnt(7)'); gaps[11].append('s_waitcnt lgkmcnt(7)'); gaps[17].append('s_waitcnt lgkmcnt(0)')
        if groups: spread_groups(gaps, groups, 0, 22)
        L += weave(mf, gaps, ['s_waitcnt lgkmcnt(7)'])
    assert n == 32
    L += ['s_nop 7', 's_nop 3', f'v_add_u32 {V(vAd)}, {S(sQw)}, {V(vL16)}']
    for d in range(2):
        for qb in range(3):
            a0 = 48 + (d * 3 + qb) * 16
            for i in range(16): L.append(f'v_mul_f32 {V(a0+i)}, {CSCALE}, {V(a0+i)}')
            t0 = 144 + (d * 3 + qb) * 8
            for i in range(8): L.append(f'v_cvt_pk_bf16_f32 {V(t0+i)}, {V(a0+2*i)}, {V(a0+2*i+1)}')
            for u in range(2):
                L.append(f'ds_write_b128 {V(vAd)}, {V(t0+4*u,4)} offset:{(qb*8 + 2*d + u)*1024}')
    L += ['s_waitcnt lgkmcnt(0)', 's_barrier']
    L += read_q(LDS_Q1)
    L += ['s_waitcnt lgkmcnt(0)', 's_barrier']
    return L

def read_q(base):
    L = [f'v_add_u32 {V(vAd)}, {base}, {V(vL16)}']
    for qb in range(3):
        for s in range(8):
            L.append(f'ds_read_b128 {Qreg(qb,s)}, {V(vAd)} offset:{(qb*8+s)*1024}')
    return L

def flush(p):
    return [f'ds_write_b128 {V(vAd+3)}, {A(32*p + 4*i, 4)} offset:{8192*p + 1024*i}' for i in range(8)]

def dma_groups(isV):
    G = []
    srd = sV if isV else sK
    for i in range(8):
        g = []
        if i % 4 == 0:
            g += [f's_add_u32 m0, {S(sM0K)}, {(8192 if isV else 0) + 4096*(i>>2)}', 's_nop 0']
        voff = vOffV if isV else vOffK + (i & 3)
        g.append(f'buffer_load_dwordx4 {V(voff)}, {S(srd,4)}, {S(sSo + (i>>2))} offen offset:{1024*(i&3)}{KVF} lds')
        G.append(g)
    return G

def exp_block(qb):
    s0 = vS + 16 * qb; p0 = vP + 8 * qb
    L = []
    for i in range(16 + 2):
        if i < 16: L.append(f'v_exp_f32 {V(vE + (i & 7))}, {V(s0 + i)}')
        j = i - 2
        if j >= 0:
            e = V(vE + (j & 7))
            if j == 1: L.append(f'v_add_f32 {V(vTs)}, {V(vE)}, {e}')
            elif j > 1: L.append(f'v_add_f32 {V(vTs)}, {V(vTs)}, {e}')
            if j & 1: L.append(f'v_cvt_pk_bf16_f32 {V(p0 + (j >> 1))}, {V(vE + ((j-1) & 7))}, {e}')
    return L

def max_block(qb, m, t):
    s0 = vS + 16 * qb
    L = [f'v_max3_f32 {V(m)}, {V(s0)}, {V(s0+1)}, {V(s0+2)}', f'v_max3_f32 {V(t)}, {V(s0+3)}, {V(s0+4)}, {V(s0+5)}']
    for k in range(6, 14, 4):
        L += [f'v_max3_f32 {V(m)}, {V(m)}, {V(s0+k)}, {V(s0+k+1)}', f'v_max3_f32 {V(t)}, {V(t)}, {V(s0+k+2)}, {V(s0+k+3)}']
    L += [f'v_max3_f32 {V(m)}, {V(m)}, {V(s0+14)}, {V(s0+15)}', f'v_max_f32 {V(m)}, {V(m)}, {V(t)}', f'v_mov_b32 {V(t)}, {V(m)}',
          's_nop 1', f'v_permlane32_swap_b32 {V(m)}, {V(t)}', 's_nop 0', f'v_max_f32 {V(m)}, {V(m)}, {V(t)}']
    return L

def sm_stream(qb, first, tag):
    s0 = vS + 16 * qb; n0 = vN + 16 * qb
    if first:
        m, t = vE, vE + 1
        L = max_block(qb, m, t)
        for i in range(16): L.append(f'v_sub_f32 {V(s0+i)}, {V(s0+i)}, {V(m)}')
        for i in range(16): L.append(f'v_sub_f32 {V(n0+i)}, 0, {V(m)}')
        L += exp_block(qb)
        L.append(f'v_mov_b32 {V(vL+qb)}, {V(vTs)}')
        return L
    L = exp_block(qb)
    L += [f'v_cmp_lt_f32 vcc, {S(sThr)}, {V(vTs)}', f's_cbranch_vccnz SLOW{qb}', f'BACK{qb}:',
          f'v_add_f32 {V(vL+qb)}, {V(vL+qb)}, {V(vTs)}']
    return L

def slow_path(qb):
    s0 = vS + 16 * qb; n0 = vN + 16 * qb
    m, t, sc = vE, vE + 1, vE + 2
    L = [f'SLOW{qb}:', 's_nop 7', 's_nop 7']
    L += max_block(qb, m, t)
    L += [f'v_max_f32 {V(m)}, 0, {V(m)}', f'v_exp_f32 {V(sc)}, -{V(m)}', f'v_sub_f32 {V(t)}, {V(n0)}, {V(m)}']
    for i in range(16): L.append(f'v_mov_b32 {V(n0+i)}, {V(t)}')
    for i in range(16): L.append(f'v_sub_f32 {V(s0+i)}, {V(s0+i)}, {V(m)}')
    L.append(f'v_mul_f32 {V(vL+qb)}, {V(vL+qb)}, {V(sc)}')
    for a in range(4):
        for i in range(0, 16, 4):
            o = Oacc(a, qb) + i
            for k in range(4): L.append(f'v_accvgpr_read_b32 {V(vE+4+k)}, {A(o+k)}')
            for k in range(4): L.append(f'v_mul_f32 {V(vE+4+k)}, {V(vE+4+k)}, {V(sc)}')
            for k in range(4): L.append(f'v_accvgpr_write_b32 {A(o+k)}, {V(vE+4+k)}')
    L += exp_block(qb)
    L += ['s_nop 3', f's_branch BACK{qb}']
    return L

def tile(first, pre):
    L = soff_calc(sSo, 2)
    L += ['s_waitcnt vmcnt(24)']
    if pre:
        L += [f'v_add_u32 {V(vAd+3)}, {S(sM0K)}, {V(vL16)}'] + flush(0)
    for s in range(8):
        if s == 0: L.append(f'ds_read_b128 {V(vKf,4)}, {V(vKb)}')
        else:
            L += [f'v_xor_b32 {V(vAd + (s&1))}, {32*s}, {V(vKb)}', f'ds_read_b128 {V(vKf+4*s,4)}, {V(vAd + (s&1))}']
    L.append(f'v_xor_b32 {V(vKb)}, 0x4000, {V(vKb)}')
    mf = []
    for qb in range(3):
        for s in range(8):
            d = V(vS + 16*qb, 16)
            c = d if s else ('0' if first else V(vN + 16*qb, 16))
            mf.append(f'{MF} {d}, {V(vKf+4*s,4)}, {Qreg(qb,s)}, {c}')
    gaps = [[] for _ in range(24)]
    for s in range(1, 8): gaps[s-1].append(f's_waitcnt lgkmcnt({7-s})')
    spread_groups(gaps, dma_groups(False), 7, 10)
    spread(gaps, sm_stream(0, first, 0), 10, 17)
    spread(gaps, sm_stream(1, first, 1), 18, 23)
    L += weave(mf, gaps, ['s_waitcnt lgkmcnt(7)'])
    L += ['s_waitcnt vmcnt(24)']
    if pre: L += flush(1)
    for a in range(1, 4): L.append(f'v_xor_b32 {V(vAd + a - 1)}, {64*a}, {V(vVb)}')
    for a in range(4):
        for u in range(2):
            for wp in range(2):
                ad = V(vVb) if a == 0 else V(vAd + a - 1)
                L.append(f'ds_read_b64_tr_b16 {V(vVf + (a*2+u)*4 + 2*wp, 2)}, {ad} offset:{4096*u + 2048*wp}')
    L.append(f'v_xor_b32 {V(vVb)}, 0x4000, {V(vVb)}')
    if pre:
        L += ['s_waitcnt lgkmcnt(0)']
        for g in dma_groups(True): L += g
        L += ['s_waitcnt vmcnt(16)'] + flush(2) + flush(3) + ['s_waitcnt lgkmcnt(0)']
    mf = []
    for qb in range(3):
        for a in range(4):
            for u in range(2):
                d = A(Oacc(a, qb), 16)
                c = '0' if (first and u == 0) else d
                mf.append(f'{MF} {d}, {V(vVf+(a*2+u)*4,4)}, {V(vP+8*qb+4*u,4)}, {c}')
    gaps = [[] for _ in range(24)]
    if not pre:
        for k in range(1, 8): gaps[k-1].append(f's_waitcnt lgkmcnt({14-2*k})')
        spread_groups(gaps, dma_groups(True), 7, 10)
    spread(gaps, sm_stream(2, first, 2), 0, 14)
    L += weave(mf, gaps, ['s_waitcnt lgkmcnt(14)'])
    L += [f's_xor_b32 {S(sM0K)}, {S(sM0K)}, 0x4000', f's_add_u32 {S(sT)}, {S(sT)}, 1']
    return L

def combine():
    L = ['COMBINE:']
    L += read_q(LDS_Q2)
    for qb in range(3):
        L += [f'v_mov_b32 {V(vE)}, {V(vL+qb)}', 's_nop 1', f'v_permlane32_swap_b32 {V(vE)}, {V(vL+qb)}', 's_nop 0',
              f'v_add_f32 {V(vN+16*qb+1)}, {V(vE)}, {V(vL+qb)}']
    L += [f's_mul_i32 {S(sTmp)}, {S(sWv)}, 768', f'v_add_u32 {V(vAd)}, {S(sTmp)}, {V(vStat)}']
    for qb in range(3):
        L.append(f'ds_write_b64 {V(vAd)}, {V(vN+16*qb,2)} offset:{256*qb}')
    L += ['s_waitcnt lgkmcnt(0)', 's_barrier']
    for r in range(4):
        L += [f's_xor_b32 {S(sTmp)}, {S(sWv)}, {r}', f's_mul_i32 {S(sTmp)}, {S(sTmp)}, 768', f'v_add_u32 {V(vAd)}, {S(sTmp)}, {V(vStat)}']
        for qb in range(3):
            L.append(f'ds_read_b64 {V(vKf + (qb*4+r)*2, 2)}, {V(vAd)} offset:{256*qb}')
    L += ['s_waitcnt lgkmcnt(0)']
    F = vP
    for qb in range(3):
        n = lambda r: V(vKf + (qb*4+r)*2); l = lambda r: V(vKf + (qb*4+r)*2 + 1)
        L += [f'v_min3_f32 {V(vE)}, {n(0)}, {n(1)}, {n(2)}', f'v_min_f32 {V(vE)}, {V(vE)}, {n(3)}']
        for r in range(4): L.append(f'v_sub_f32 {n(r)}, {V(vE)}, {n(r)}')
        for r in range(4): L.append(f'v_exp_f32 {n(r)}, {n(r)}')
        L += ['s_nop 0', f'v_mul_f32 {V(vE+1)}, {n(0)}, {l(0)}']
        for r in range(1, 4): L.append(f'v_fma_f32 {V(vE+1)}, {n(r)}, {l(r)}, {V(vE+1)}')
        L += [f'v_rcp_f32 {V(vE+1)}, {V(vE+1)}', 's_nop 0']
        for r in range(4): L.append(f'v_mul_f32 {V(F+qb*4+r)}, {n(r)}, {V(vE+1)}')
    for qb in range(3):
        for i in range(16): L.append(f'v_accvgpr_read_b32 {V(vS+16*qb+i)}, {A(Oacc(0,qb)+i)}')
        for i in range(16): L.append(f'v_mul_f32 {V(vS+16*qb+i)}, {V(vS+16*qb+i)}, {V(F+qb*4)}')
    L += [f's_mul_i32 {S(sTmp)}, {S(sWv)}, 6144', f's_add_u32 {S(sTmp)}, {S(sTmp)}, {LDS_XR}', f'v_add_u32 {V(vAd+1)}, {S(sTmp)}, {V(vL16)}']
    for r in range(1, 4):
        L += [f's_xor_b32 {S(sTmp)}, {S(sWv)}, {r}', f's_mul_i32 {S(sTmp)}, {S(sTmp)}, 6144', f's_add_u32 {S(sTmp)}, {S(sTmp)}, {LDS_XR}',
              f'v_add_u32 {V(vAd)}, {S(sTmp)}, {V(vL16)}']
        for qb in range(3):
            for i in range(16): L.append(f'v_accvgpr_read_b32 {V(vN+16*qb+i)}, {A(Oacc(r,qb)+i)}')
            for i in range(8): L.append(f'v_cvt_pk_bf16_f32 {V(vVf+8*qb+i)}, {V(vN+16*qb+2*i)}, {V(vN+16*qb+2*i+1)}')
        if r > 1: L += ['s_barrier']
        for qb in range(3):
            for u in range(2): L.append(f'ds_write_b128 {V(vAd)}, {V(vVf+8*qb+4*u,4)} offset:{(qb*2+u)*1024}')
        L += ['s_waitcnt lgkmcnt(0)', 's_barrier']
        for qb in range(3):
            for u in range(2): L.append(f'ds_read_b128 {V(vKf+8*qb+4*u,4)}, {V(vAd+1)} offset:{(qb*2+u)*1024}')
        L += ['s_waitcnt lgkmcnt(0)']
        for qb in range(3):
            for i in range(8):
                L += [f'v_lshlrev_b32 {V(vE)}, 16, {V(vKf+8*qb+i)}', f'v_and_b32 {V(vE+1)}, 0xffff0000, {V(vKf+8*qb+i)}',
                      f'v_fma_f32 {V(vS+16*qb+2*i)}, {V(vE)}, {V(F+qb*4+r)}, {V(vS+16*qb+2*i)}',
                      f'v_fma_f32 {V(vS+16*qb+2*i+1)}, {V(vE+1)}, {V(F+qb*4+r)}, {V(vS+16*qb+2*i+1)}']
    for qb in range(3):
        for i in range(8): L.append(f'v_cvt_pk_bf16_f32 {V(vVf+8*qb+i)}, {V(vS+16*qb+2*i)}, {V(vS+16*qb+2*i+1)}')
        L.append(f's_add_u32 {S(sTmp)}, {S(sOb)}, {qb*262144}')
        for u in range(2):
            L.append(f'buffer_store_dwordx4 {V(vVf+8*qb+4*u,4)}, {V(vL16)}, {S(sO,4)}, {S(sTmp)} offen offset:{1024*u}')
    L += [f's_add_u32 {S(sOb)}, {S(sOb)}, {12*262144}', 's_nop 1']
    return L

def k1():
    L = k1_prologue()
    L += k1_qproj()
    L += stamp()
    L += tile(True, True)
    L += ['LOOP:'] + tile(False, False)
    L += [f's_and_b32 {S(sTmp)}, {S(sT)}, 7', f's_cmp_lg_u32 {S(sTmp)}, 0', 's_cbranch_scc1 LOOP', 's_nop 7', 's_nop 7']
    if OPT['stamps']:
        L += [f's_cmp_eq_u32 {S(sT)}, 8', 's_cbranch_scc0 NOST1'] + stamp() + ['NOST1:'] + stamp()
    L += combine()
    L += [f's_cmp_eq_u32 {S(sT)}, 16', 's_cbranch_scc1 K1_FIN']
    L += stamp()
    L += tile(True, False)
    L += ['s_branch LOOP']
    for qb in range(3): L += slow_path(qb)
    L += ['K1_FIN:']
    if OPT['stamps']:
        L += ['s_waitcnt vmcnt(0)'] + stamp()
        n = stamp_n[0]
        L += ['s_waitcnt lgkmcnt(0)', f's_cmp_eq_u32 s2, {OPT["stamps"]-1}', 's_cbranch_scc0 K1_END']
        L += [f's_lshl_b32 {S(sTmp)}, {S(sWv)}, 6', 'v_mov_b32 v1, 0']
        for i in range(n):
            L += [f'v_mov_b32 v2, {S(sSt+2*i)}', f'buffer_store_dword v2, v1, {S(sDbg,4)}, {S(sTmp)} offen offset:{4*i}']
    L += ['K1_END:', 's_endpgm']
    return L

def k2():
    sWo, sOs, sOut = 4, 8, 12
    sWv, sBr, sMt, sNt, sTmp, sTmp2, sG, sM, sWs, sOsA, sOsB = 24, 25, 26, 27, 28, 29, 30, 31, 32, 33, 34
    vL16, vOffW, vRd, vAd = 0, 1, 2, 4
    vOf, vWf = 16, 144
    L = ['s_cmp_ge_u32 s2, 240', 's_cbranch_scc1 K2_END',
         's_load_dwordx2 s[40:41], s[0:1], 32', 's_load_dwordx2 s[42:43], s[0:1], 72',
         f's_load_dwordx2 {S(sOut,2)}, s[0:1], 80', f's_load_dwordx2 {S(sOs,2)}, s[0:1], 96',
         's_and_b32 s3, s2, 7', f's_lshr_b32 {S(sTmp)}, s2, 3', f's_lshr_b32 {S(sBr)}, s3, 2',
         f's_mul_i32 {S(sTmp2)}, {S(sTmp)}, 52', f's_lshr_b32 {S(sTmp2)}, {S(sTmp2)}, 8',
         f's_mul_i32 {S(sNt)}, {S(sTmp2)}, 5', f's_sub_u32 {S(sNt)}, {S(sTmp)}, {S(sNt)}',
         f's_bfe_u32 {S(sMt)}, s3, 0x10001', f's_mul_i32 {S(sMt)}, {S(sMt)}, 6', f's_add_u32 {S(sMt)}, {S(sMt)}, {S(sTmp2)}',
         's_and_b32 s3, s3, 1', 's_mul_i32 s3, s3, 5', f's_add_u32 {S(sNt)}, {S(sNt)}, s3',
         'v_lshrrev_b32 v10, 6, v0', 'v_and_b32 v11, 63, v0', 's_nop 0', f'v_readfirstlane_b32 {S(sWv)}, v10',
         'v_lshlrev_b32 v0, 4, v11',
         'v_bfe_u32 v12, v11, 4, 1', 'v_lshlrev_b32 v12, 2, v12', 'v_and_b32 v13, 7, v11', 'v_xor_b32 v12, v12, v13',
         'v_lshlrev_b32 v12, 4, v12', 'v_lshrrev_b32 v13, 3, v11', 'v_mul_u32_u24 v13, 0x500, v13', f'v_add_u32 {V(vOffW)}, v12, v13',
         'v_lshrrev_b32 v12, 5, v11', 'v_bfe_u32 v13, v11, 2, 2', 'v_lshlrev_b32 v14, 3, v12', 'v_add_u32 v14, v14, v13',
         'v_lshlrev_b32 v14, 7, v14', 'v_lshrrev_b32 v13, 1, v13', f's_and_b32 {S(sTmp)}, {S(sWv)}, 1', f'v_xor_b32 v13, {S(sTmp)}, v13',
         'v_lshlrev_b32 v13, 6, v13', 'v_add_u32 v14, v14, v13',
         'v_and_b32 v13, 16, v11', 'v_lshlrev_b32 v13, 1, v13', 'v_add_u32 v14, v14, v13',
         'v_and_b32 v13, 1, v11', 'v_lshlrev_b32 v13, 4, v13', 'v_add_u32 v14, v14, v13',
         'v_and_b32 v13, 2, v11', 'v_lshlrev_b32 v13, 2, v13', 'v_add_u32 v14, v14, v13',
         f's_lshl_b32 {S(sM)}, {S(sWv)}, 15', f'v_add_u32 {V(vRd)}, {S(sM)}, v14', f'v_xor_b32 {V(vRd+1)}, 64, {V(vRd)}',
         'v_and_b32 v13, 31, v11', 'v_mul_u32_u24 v13, 0xa00, v13', 'v_lshlrev_b32 v12, 4, v12', 'v_add_u32 v5, v12, v13',
         's_waitcnt lgkmcnt(0)',
         f's_cmp_eq_u32 {S(sBr)}, 0', f's_cselect_b64 {S(sWo,2)}, s[40:41], s[42:43]',
         f's_and_b32 {S(sWo+1)}, {S(sWo+1)}, 0xffff', f's_mov_b32 {S(sWo+2)}, 5242880', f's_mov_b32 {S(sWo+3)}, 0x20000',
         f's_mul_i32 s3, {S(sBr)}, 6291456', f's_add_u32 {S(sOs)}, {S(sOs)}, s3', f's_addc_u32 {S(sOs+1)}, {S(sOs+1)}, 0',
         f's_and_b32 {S(sOs+1)}, {S(sOs+1)}, 0xffff', f's_mov_b32 {S(sOs+2)}, 6291456', f's_mov_b32 {S(sOs+3)}, 0x20000',
         f's_and_b32 {S(sOut+1)}, {S(sOut+1)}, 0xffff', f's_mov_b32 {S(sOut+2)}, 1966080', f's_mov_b32 {S(sOut+3)}, 0x20000',
         f's_mul_i32 {S(sWs)}, {S(sWv)}, 1310720', f's_lshl_b32 s3, {S(sNt)}, 7', f's_add_u32 {S(sWs)}, {S(sWs)}, s3',
         f's_lshr_b32 {S(sTmp)}, {S(sWv)}, 1', f's_lshl_b32 s3, {S(sMt)}, 1', f's_add_u32 s3, s3, {S(sTmp)}',
         f's_lshl_b32 {S(sOsA)}, s3, 18', f's_lshl_b32 {S(sTmp2)}, {S(sWv)}, 16', f's_add_u32 {S(sOsA)}, {S(sOsA)}, {S(sTmp2)}',
         f's_xor_b32 {S(sOsB)}, {S(sOsA)}, 0x40000',
         ]
    def issue(b):
        G = []
        for i in range(8):
            G.append([f's_add_u32 m0, {S(sM)}, {8192*b + 1024*i}', f's_add_u32 {S(sTmp)}, {S(sWs)}, {i*10240}',
                      f'buffer_load_dwordx4 {V(vOffW)}, {S(sWo,4)}, {S(sTmp)} offen lds'])
        for ks in range(4):
            for aq in range(2):
                G.append([f'buffer_load_dwordx4 {V(vOf + 32*b + (ks*2+aq)*4, 4)}, {V(vL16)}, {S(sOs,4)}, {S(sOsA+aq)} offen offset:{1024*ks}'])
        G[-1] += [f's_add_u32 {S(sWs)}, {S(sWs)}, 81920', f's_add_u32 {S(sOsA)}, {S(sOsA)}, 4096', f's_add_u32 {S(sOsB)}, {S(sOsB)}, 4096']
        return G
    for b in range(3):
        for g in issue(b): L += g
    for i in range(64): L.append(f'v_accvgpr_write_b32 {A(i)}, 0')
    def body(b, nxt, wait):
        l = [f's_waitcnt vmcnt({wait})']
        for ks in range(4):
            for an in range(2):
                for wp in range(2):
                    l.append(f'ds_read_b64_tr_b16 {V(vWf + (ks*2+an)*4 + 2*wp, 2)}, {V(vRd+an)} offset:{8192*b + 2048*ks + 512*wp}')
        mf = []
        for ks in range(4):
            for an in range(2):
                for aq in range(2):
                    d = A((an*2+aq)*16, 16)
                    mf.append(f'{MF} {d}, {V(vWf+(ks*2+an)*4,4)}, {V(vOf+32*b+(ks*2+aq)*4,4)}, {d}')
        gaps = [[] for _ in range(16)]
        for k in range(1, 8): gaps[2*k-1].append(f's_waitcnt lgkmcnt({14-2*k})')
        if nxt: spread_groups(gaps, issue((b + 3) % 4), 0, 15)
        return l + weave(mf, gaps, ['s_waitcnt lgkmcnt(14)'])
    L += [f's_mov_b32 {S(sG)}, 0', 'K2_LOOP:']
    for b in range(4): L += body(b, True, 32)
    L += [f's_add_u32 {S(sG)}, {S(sG)}, 1', f's_cmp_lt_u32 {S(sG)}, 3', 's_cbranch_scc1 K2_LOOP']
    L += body(0, True, 32) + body(1, False, 32) + body(2, False, 16) + body(3, False, 0)
    L += ['s_nop 7', 's_nop 7', 's_barrier']
    for a in range(1, 4):
        an, aq = a >> 1, a & 1
        L += [f's_xor_b32 {S(sTmp)}, {S(sWv)}, {an | (aq << 1)}', f's_mul_i32 {S(sTmp)}, {S(sTmp)}, 12288', f'v_add_u32 {V(vAd)}, {S(sTmp)}, {V(vL16)}']
        for i in range(4): L.append(f'ds_write_b128 {V(vAd)}, {A(a*16+4*i,4)} offset:{(a-1)*4096 + 1024*i}')
    L += [f's_mul_i32 {S(sTmp)}, {S(sWv)}, 12288', f'v_add_u32 {V(vAd)}, {S(sTmp)}, {V(vL16)}']
    for i in range(16): L.append(f'v_accvgpr_read_b32 {V(16+i)}, {A(i)}')
    L += ['s_waitcnt lgkmcnt(0)', 's_barrier']
    for k in range(12): L.append(f'ds_read_b128 {V(32+4*k,4)}, {V(vAd)} offset:{1024*k}')
    L += [f's_lshr_b32 {S(sTmp)}, {S(sWv)}, 1', f's_lshl_b32 s3, {S(sMt)}, 1', f's_add_u32 s3, s3, {S(sTmp)}', 's_mul_i32 s3, s3, 81920',
          f's_mul_i32 {S(sTmp)}, {S(sBr)}, 1280', f's_add_u32 s3, s3, {S(sTmp)}', f's_lshl_b32 {S(sTmp)}, {S(sNt)}, 7', f's_add_u32 s3, s3, {S(sTmp)}',
          f's_and_b32 {S(sTmp)}, {S(sWv)}, 1', f's_lshl_b32 {S(sTmp)}, {S(sTmp)}, 6', f's_add_u32 s3, s3, {S(sTmp)}']
    L += ['s_waitcnt lgkmcnt(0)']
    for a in range(3):
        for i in range(16): L.append(f'v_add_f32 {V(16+i)}, {V(16+i)}, {V(32+16*a+i)}')
    for i in range(8): L.append(f'v_cvt_pk_bf16_f32 {V(80+i)}, {V(16+2*i)}, {V(17+2*i)}')
    for u in range(2): L.append(f'buffer_store_dwordx4 {V(80+4*u,4)}, v5, {S(sOut,4)}, s3 offen offset:{32*u}')
    L += ['K2_END:', 's_endpgm']
    return L

def emit(kname, L, nv, acc):
    out = [f'.globl {kname}', '.p2align 8', f'.type {kname},@function', f'{kname}:']
    for t in L: out.append(t if is_label(t) else '    ' + t)
    desc = ['.p2align 6', f'.amdhsa_kernel {kname}', f'  .amdhsa_next_free_vgpr {nv}', '  .amdhsa_next_free_sgpr 102',
            f'  .amdhsa_accum_offset {acc}', '  .amdhsa_group_segment_fixed_size 0', '  .amdhsa_kernarg_size 104',
            '  .amdhsa_user_sgpr_count 2', '  .amdhsa_user_sgpr_kernarg_segment_ptr 1', '  .amdhsa_system_sgpr_workgroup_id_x 1',
            '.end_amdhsa_kernel']
    return out, desc

def main():
    a = k1(); b = k2()
    bad = check_seq(code_only(a), 'k1') + check_seq(code_only(b), 'k2')
    k1n, k2n = NAME + '_kernel', 'oproj_kernel'
    hdr = [f'; @launch kernel={k1n} grid=(256,1,1) block=(256,1,1) lds=163840',
           f'; @launch kernel={k2n} grid=(240,1,1) block=(256,1,1) lds=131072',
           '.amdgcn_target "amdgcn-amd-amdhsa--gfx950"', '.text']
    c1, d1 = emit(k1n, a, 512, 256); c2, d2 = emit(k2n, b, 256, 192)
    txt = '\n'.join(hdr + c1 + c2 + ['.section .rodata,"a"'] + d1 + d2) + '\n'
    open(sys.argv[1], 'w').write(txt)
    print('hazards', bad, 'lines', len(a), len(b))
main()
```

```python
import sys, struct, math
sys.path.insert(0, 'gen')
from asmlib import *

NAME = 'concat_heads__gqa_block_cached__mha_block_cached__near_ridge'
def f32(x): return '0x%08x' % struct.unpack('<I', struct.pack('<f', x))[0]
CSCALE = f32(128 ** -0.5 * math.log2(math.e))

OPT = dict(kvflag='', early=8, per=4, stamps=0, rot=0)
for a in sys.argv[2:]:
    k, v = a.split('=')
    OPT[k] = v if not v.lstrip('-').isdigit() else int(v)
KVF = (' ' + OPT['kvflag']) if OPT['kvflag'] else ''

def R(f, a, n=1):
    return f'{f}{a}' if n == 1 else f'{f}[{a}:{a+n-1}]'
V = lambda a, n=1: R('v', a, n)
A = lambda a, n=1: R('a', a, n)
S = lambda a, n=1: R('s', a, n)
MF = 'v_mfma_f32_32x32x16_bf16'

sK, sV, sW, sX, sO = 4, 8, 12, 16, 20
sWv, sBr, sH, sBp, sT, sSo, sSo2, sM0K, sW8, sTmp, sTmp2 = 24, 25, 26, 27, 28, 29, 30, 31, 32, 33, 34
sWb, sXb, sWm, sXm, sThr, sOb, sQw, sRot = 35, 36, 37, 38, 39, 56, 57, 58
sDbg = 60
sSt = 64
vL16, vKb, vVb, vOffK, vOffV = 0, 1, 2, 3, 7
vL, vTs, vAd, vE, vP, vS, vN, vKf, vVf, vQ2 = 8, 11, 12, 16, 24, 48, 96, 144, 176, 208
vOffW, vOffX, vWA, vXA = 240, 241, 243, 247
vStat = 255
def Qreg(qb, s):
    return A(192 + qb * 32 + 4 * s, 4) if qb < 2 else V(vQ2 + 4 * s, 4)
def Oacc(a, qb): return (a * 3 + qb) * 16
LDS_Q1, LDS_Q2, LDS_STAT, LDS_XR = 81920, 131072, 155648, 131072
SB = [0, 40960, 81920, 122880]

stamp_n = [0]
def stamp():
    if not OPT['stamps']: return []
    i = stamp_n[0]; stamp_n[0] += 1
    return [f's_memrealtime {S(sSt + 2 * i, 2)}']

def stamp_init(koff):
    if not OPT['stamps']: return []
    stamp_n[0] = 0
    return [f's_load_dwordx2 {S(sDbg,2)}, s[0:1], 96', 's_memtime s[96:97]'] + stamp()
def stamp_dump(koff, swv, stmp):
    if not OPT['stamps']: return []
    L = ['s_waitcnt vmcnt(0)'] + stamp() + ['s_memtime s[98:99]', 's_waitcnt lgkmcnt(0)']
    L += [f's_add_u32 {S(sDbg)}, {S(sDbg)}, {(16<<20) + koff}', f's_addc_u32 {S(sDbg+1)}, {S(sDbg+1)}, 0',
          f's_and_b32 {S(sDbg+1)}, {S(sDbg+1)}, 0xffff', f's_mov_b32 {S(sDbg+2)}, 65536', f's_mov_b32 {S(sDbg+3)}, 0x20000',
          f's_lshl_b32 {S(stmp)}, s2, 2', f's_add_u32 {S(stmp)}, {S(stmp)}, {S(swv)}', f's_lshl_b32 {S(stmp)}, {S(stmp)}, 6', 'v_mov_b32 v1, 0']
    for i in range(stamp_n[0]):
        L += [f'v_mov_b32 v2, {S(sSt+2*i)}', f'buffer_store_dword v2, v1, {S(sDbg,4)}, {S(stmp)} offen offset:{4*i}']
    L += ['s_sub_u32 s98, s98, s96', 'v_mov_b32 v2, s98', f'buffer_store_dword v2, v1, {S(sDbg,4)}, {S(stmp)} offen offset:60']
    L += ['s_getreg_b32 s98, hwreg(HW_REG_XCC_ID)', 'v_mov_b32 v2, s98', f'buffer_store_dword v2, v1, {S(sDbg,4)}, {S(stmp)} offen offset:56']
    return L

def k1_prologue():
    L = [
        's_cmp_ge_u32 s2, 256', 's_cbranch_scc1 K1_END',
        's_load_dwordx8 s[40:47], s[0:1], 0', 's_load_dwordx8 s[48:55], s[0:1], 40',
        f's_load_dwordx2 {S(sO,2)}, s[0:1], 96',
    ]
    L += stamp_init(0)
    L += [
        's_and_b32 s3, s2, 7', f's_lshr_b32 {S(sTmp)}, s2, 3', f's_lshr_b32 {S(sBr)}, s3, 2',
        's_and_b32 s3, s3, 3', 's_lshl_b32 s3, s3, 3', f's_and_b32 {S(sH)}, {S(sTmp)}, 7',
        f's_add_u32 {S(sH)}, {S(sH)}, s3', f's_lshr_b32 {S(sBp)}, {S(sTmp)}, 3',
        'v_lshrrev_b32 v20, 6, v0', 'v_and_b32 v21, 63, v0', 's_nop 0',
        f'v_readfirstlane_b32 {S(sWv)}, v20',
        'v_lshlrev_b32 v0, 4, v21',
        'v_lshrrev_b32 v22, 4, v21',
        'v_and_b32 v23, 15, v21',
        'v_xor_b32 v24, v23, v22', 'v_lshlrev_b32 v24, 4, v24', 'v_lshlrev_b32 v25, 8, v22',
        f'v_add_u32 {V(vOffK)}, v24, v25',
        f'v_xor_b32 {V(vOffK+1)}, 64, {V(vOffK)}', f'v_xor_b32 {V(vOffK+2)}, 0x80, {V(vOffK)}',
        f'v_xor_b32 {V(vOffK+3)}, 0xc0, {V(vOffK)}',
        'v_lshlrev_b32 v24, 2, v22', 'v_xor_b32 v24, v23, v24', 'v_lshlrev_b32 v24, 4, v24',
        f'v_add_u32 {V(vOffV)}, v24, v25', 'v_lshlrev_b32 v25, 13, v22', f'v_add_u32 {V(vOffW)}, v24, v25',
        'v_and_b32 v24, 7, v21', 'v_xor_b32 v24, v24, v22', 'v_lshlrev_b32 v24, 4, v24',
        'v_lshrrev_b32 v25, 3, v21', 'v_mul_u32_u24 v25, 0x500, v25', f'v_add_u32 {V(vOffX)}, v24, v25',
        f'v_xor_b32 {V(vOffX+1)}, 64, {V(vOffX)}',
        f's_lshl_b32 {S(sW8)}, {S(sWv)}, 13', f's_lshl_b32 {S(sM0K)}, {S(sWv)}, 15',
        f's_lshl_b32 {S(sWb)}, {S(sWv)}, 17', f's_lshl_b32 {S(sWm)}, {S(sWv)}, 12',
        f's_mul_i32 {S(sXm)}, {S(sWv)}, 6144', f's_add_u32 {S(sXm)}, {S(sXm)}, 16384',
        f's_lshr_b32 {S(sTmp)}, {S(sWv)}, 1', f's_mul_i32 {S(sXb)}, {S(sTmp)}, 491520',
        f's_and_b32 {S(sTmp2)}, {S(sWv)}, 1', f's_mul_i32 s3, {S(sTmp2)}, 61440', f's_add_u32 {S(sXb)}, {S(sXb)}, s3',
        f's_mov_b32 {S(sThr)}, {f32(256.0)}',
        f's_mul_i32 {S(sQw)}, {S(sTmp)}, {LDS_Q2 - LDS_Q1}', f's_lshl_b32 s3, {S(sTmp2)}, 12',
        f's_add_u32 {S(sQw)}, {S(sQw)}, s3', f's_add_u32 {S(sQw)}, {S(sQw)}, {LDS_Q1}',
        'v_lshrrev_b32 v26, 5, v21', 'v_and_b32 v27, 31, v21', 'v_bfe_u32 v28, v21, 2, 2',
        'v_and_b32 v29, 16, v21', 'v_lshlrev_b32 v29, 1, v29',
        'v_and_b32 v30, 1, v21', 'v_lshlrev_b32 v30, 4, v30', 'v_add_u32 v29, v29, v30',
        'v_and_b32 v30, 2, v21', 'v_lshlrev_b32 v30, 2, v30', 'v_add_u32 v29, v29, v30',
        'v_xor_b32 v30, v26, v23', 'v_lshlrev_b32 v30, 4, v30', 'v_lshlrev_b32 v31, 8, v27',
        'v_add_u32 v30, v30, v31', f'v_add_u32 {V(vKb)}, {S(sM0K)}, v30',
        'v_lshlrev_b32 v30, 2, v26', 'v_add_u32 v30, v30, v28', 'v_lshlrev_b32 v30, 8, v30',
        f'v_xor_b32 v31, {S(sWv)}, v28', 'v_lshlrev_b32 v31, 6, v31', 'v_add3_u32 v30, v30, v31, v29',
        f'v_add_u32 v30, {S(sM0K)}, v30', f'v_add_u32 {V(vVb)}, 0x2000, v30',
        'v_lshlrev_b32 v30, 3, v26', 'v_add_u32 v30, v30, v28', 'v_lshlrev_b32 v30, 8, v30',
        f's_lshl_b32 s3, {S(sTmp2)}, 1', 'v_xor_b32 v31, s3, v28', 'v_lshlrev_b32 v31, 6, v31',
        f'v_add3_u32 {V(vWA)}, v30, v31, v29', f'v_xor_b32 {V(vWA+1)}, 64, {V(vWA)}',
        f'v_add_u32 {V(vWA+2)}, {SB[2]}, {V(vWA)}', f'v_add_u32 {V(vWA+3)}, {SB[2]}, {V(vWA+1)}',
        f's_mul_i32 s3, {S(sTmp)}, 12288', 's_add_u32 s3, s3, 16384',
        'v_bfe_u32 v30, v21, 1, 3', 'v_xor_b32 v30, v30, v26', 'v_lshlrev_b32 v30, 4, v30',
        'v_lshlrev_b32 v31, 7, v27', f'v_add3_u32 {V(vXA)}, v30, v31, s3',
    ]
    for ks in range(1, 4):
        L += [f'v_xor_b32 {V(vXA+ks)}, {32*ks}, {V(vXA)}']
    for ks in range(4):
        L += [f'v_add_u32 {V(vXA+4+ks)}, {SB[2]}, {V(vXA+ks)}']
    L += [f'v_lshlrev_b32 {V(vStat)}, 3, v27', f'v_add_u32 {V(vStat)}, {LDS_STAT}, {V(vStat)}']
    L += [
        's_waitcnt lgkmcnt(0)',
        f's_cmp_eq_u32 {S(sBr)}, 0',
        's_cselect_b64 s[40:41], s[40:41], s[48:49]', 's_cselect_b64 s[42:43], s[42:43], s[50:51]',
        's_cselect_b64 s[44:45], s[44:45], s[52:53]', 's_cselect_b64 s[46:47], s[46:47], s[54:55]',
        f's_lshl_b32 s3, {S(sBp)}, 5', f's_add_u32 s3, s3, {S(sH)}', 's_lshl_b32 s3, s3, 18',
        f's_add_u32 {S(sK)}, s42, s3', f's_addc_u32 {S(sK+1)}, s43, 0', f's_and_b32 {S(sK+1)}, {S(sK+1)}, 0xffff',
        f's_sub_u32 {S(sK+2)}, 0x4000000, s3', f's_mov_b32 {S(sK+3)}, 0x20000',
        f's_add_u32 {S(sV)}, s44, s3', f's_addc_u32 {S(sV+1)}, s45, 0', f's_and_b32 {S(sV+1)}, {S(sV+1)}, 0xffff',
        f's_sub_u32 {S(sV+2)}, 0x4000000, s3', f's_mov_b32 {S(sV+3)}, 0x20000',
        f's_lshl_b32 s3, {S(sH)}, 8',
        f's_add_u32 {S(sW)}, s46, s3', f's_addc_u32 {S(sW+1)}, s47, 0', f's_and_b32 {S(sW+1)}, {S(sW+1)}, 0xffff',
        f's_sub_u32 {S(sW+2)}, 5242880, s3', f's_mov_b32 {S(sW+3)}, 0x20000',
        f's_mul_i32 s3, {S(sBp)}, 122880',
        f's_add_u32 {S(sX)}, s40, s3', f's_addc_u32 {S(sX+1)}, s41, 0', f's_and_b32 {S(sX+1)}, {S(sX+1)}, 0xffff',
        f's_sub_u32 {S(sX+2)}, 983040, s3', f's_mov_b32 {S(sX+3)}, 0x20000',
        f's_mul_i32 s3, {S(sBr)}, 6291456',
        f's_add_u32 {S(sO)}, {S(sO)}, s3', f's_addc_u32 {S(sO+1)}, {S(sO+1)}, 0', f's_and_b32 {S(sO+1)}, {S(sO+1)}, 0xffff',
        f's_mov_b32 {S(sO+2)}, 6291456', f's_mov_b32 {S(sO+3)}, 0x20000',
        f's_mul_i32 {S(sOb)}, {S(sBp)}, 768', f's_lshl_b32 s3, {S(sH)}, 3', f's_add_u32 {S(sOb)}, {S(sOb)}, s3',
        f's_lshl_b32 s3, {S(sWv)}, 1', f's_add_u32 {S(sOb)}, {S(sOb)}, s3', f's_lshl_b32 {S(sOb)}, {S(sOb)}, 10',
        f's_mov_b32 {S(sT)}, 0',
    ]
    if OPT['rot']:
        L += [f's_lshr_b32 {S(sRot)}, s2, 3', f's_and_b32 {S(sRot)}, {S(sRot)}, 7']
    else:
        L += [f's_mov_b32 {S(sRot)}, 0']
    return L

def stage_dma(j):
    sb = SB[j % 4]; G = []
    for i in range(4):
        G.append([f's_add_u32 m0, {S(sWm)}, {sb + 1024*i}', f's_add_u32 {S(sTmp)}, {S(sWb)}, {j*524288 + i*32768}',
                  f'buffer_load_dwordx4 {V(vOffW)}, {S(sW,4)}, {S(sTmp)} offen lds'])
    for i in range(6):
        G.append([f's_add_u32 m0, {S(sXm)}, {sb + 1024*i}', f's_add_u32 {S(sTmp)}, {S(sXb)}, {j*128 + i*10240}',
                  f'buffer_load_dwordx4 {V(vOffX + (i&1))}, {S(sX,4)}, {S(sTmp)} offen lds'])
    return G

def soff_calc(dst, tadd):
    return [f's_add_u32 {S(sTmp)}, {S(sT)}, {tadd}', f's_lshr_b32 {S(sTmp2)}, {S(sTmp)}, 3', f's_lshl_b32 {S(sTmp2)}, {S(sTmp2)}, 25',
            f's_add_u32 {S(sTmp)}, {S(sTmp)}, {S(sRot)}',
            f's_and_b32 {S(sTmp)}, {S(sTmp)}, 7', f's_lshl_b32 {S(sTmp)}, {S(sTmp)}, 15', f's_add_u32 {S(dst)}, {S(sTmp)}, {S(sTmp2)}',
            f's_add_u32 {S(dst)}, {S(dst)}, {S(sW8)}', f's_add_u32 {S(dst+1)}, {S(dst)}, 4096']

def kv_pre(n):
    p, i = n >> 3, n & 7
    so = 40 + 2 * (p >> 1) + (i >> 2)
    voff = vOffK + (i & 3) if p % 2 == 0 else vOffV
    srd = sK if p % 2 == 0 else sV
    return [f'buffer_load_dwordx4 {A(32*p + 4*i, 4)}, {V(voff)}, {S(srd,4)}, {S(so)} offen offset:{1024*(i&3)}{KVF}']

def spread_groups(gaps, groups, g0, g1):
    n = g1 - g0 + 1
    for k, g in enumerate(groups):
        gaps[g0 + (k * n) // len(groups)].extend(g)

def k1_qproj():
    L = []
    L += soff_calc(40, 0) + soff_calc(42, 1)
    seq = []
    for j in range(3):
        for g in stage_dma(j): L += g; seq.append(('st', j))
    n = 0
    for _ in range(OPT['early']):
        L += kv_pre(n); seq.append(('kv', n)); n += 1
    Wf = lambda ks, d: 144 + ks * 8 + d * 4
    Xf = lambda ks, qb: 176 + ks * 12 + qb * 4
    for j in range(10):
        last = max(i for i, t in enumerate(seq) if t == ('st', j))
        L += [f's_waitcnt vmcnt({len(seq) - 1 - last})', 's_barrier']
        if j in (0, 1, 3, 6, 9) and OPT['stamps']: L += stamp() + ['s_waitcnt lgkmcnt(0)']
        b = j % 4; hi = b >> 1; off = (b & 1) * 40960
        def reads(ks):
            r = []
            for d in range(2):
                for wp in range(2):
                    r.append(f'ds_read_b64_tr_b16 {V(Wf(ks,d) + 2*wp, 2)}, {V(vWA + 2*hi + d)} offset:{off + 4096*ks + 1024*wp}')
            for qb in range(3):
                r.append(f'ds_read_b128 {V(Xf(ks,qb), 4)}, {V(vXA + 4*hi + ks)} offset:{off + 4096*qb}')
            return r
        L += reads(0) + reads(1)
        groups = []
        if j + 3 < 10:
            for g in stage_dma(j + 3): groups.append(g); seq.append(('st', j + 3))
        k = OPT['per'] if j + 3 < 10 else 32
        while k > 0 and n < 32:
            groups.append(kv_pre(n)); seq.append(('kv', n)); n += 1; k -= 1
        mf = []; gaps = [[] for _ in range(24)]
        for ks in range(4):
            for d in range(2):
                for qb in range(3):
                    acc = V(48 + (d * 3 + qb) * 16, 16)
                    c = '0' if (j == 0 and ks == 0) else acc
                    mf.append(f'{MF} {acc}, {V(Wf(ks,d),4)}, {V(Xf(ks,qb),4)}, {c}')
        spread(gaps, reads(2), 0, 4); spread(gaps, reads(3), 6, 10)
        gaps[5].append('s_waitcnt lgkmcnt(7)'); gaps[11].append('s_waitcnt lgkmcnt(7)'); gaps[17].append('s_waitcnt lgkmcnt(0)')
        if groups: spread_groups(gaps, groups, 0, 22)
        L += weave(mf, gaps, ['s_waitcnt lgkmcnt(7)'])
    assert n == 32
    L += ['s_nop 7', 's_nop 3', f'v_add_u32 {V(vAd)}, {S(sQw)}, {V(vL16)}']
    for d in range(2):
        for qb in range(3):
            a0 = 48 + (d * 3 + qb) * 16
            for i in range(16): L.append(f'v_mul_f32 {V(a0+i)}, {CSCALE}, {V(a0+i)}')
            t0 = 144 + (d * 3 + qb) * 8
            for i in range(8): L.append(f'v_cvt_pk_bf16_f32 {V(t0+i)}, {V(a0+2*i)}, {V(a0+2*i+1)}')
            for u in range(2):
                L.append(f'ds_write_b128 {V(vAd)}, {V(t0+4*u,4)} offset:{(qb*8 + 2*d + u)*1024}')
    L += ['s_waitcnt lgkmcnt(0)', 's_barrier']
    L += read_q(LDS_Q1)
    L += ['s_waitcnt lgkmcnt(0)', 's_barrier']
    return L

def read_q(base):
    L = [f'v_add_u32 {V(vAd)}, {base}, {V(vL16)}']
    for qb in range(3):
        for s in range(8):
            L.append(f'ds_read_b128 {Qreg(qb,s)}, {V(vAd)} offset:{(qb*8+s)*1024}')
    return L

def flush(p):
    return [f'ds_write_b128 {V(vAd+3)}, {A(32*p + 4*i, 4)} offset:{8192*p + 1024*i}' for i in range(8)]

def dma_groups(isV):
    G = []
    srd = sV if isV else sK
    for i in range(8):
        g = []
        if i % 4 == 0:
            g += [f's_add_u32 m0, {S(sM0K)}, {(8192 if isV else 0) + 4096*(i>>2)}', 's_nop 0']
        voff = vOffV if isV else vOffK + (i & 3)
        g.append(f'buffer_load_dwordx4 {V(voff)}, {S(srd,4)}, {S(sSo + (i>>2))} offen offset:{1024*(i&3)}{KVF} lds')
        G.append(g)
    return G

def exp_block(qb):
    s0 = vS + 16 * qb; p0 = vP + 8 * qb
    L = []
    for i in range(16 + 2):
        if i < 16: L.append(f'v_exp_f32 {V(vE + (i & 7))}, {V(s0 + i)}')
        j = i - 2
        if j >= 0:
            e = V(vE + (j & 7))
            if j == 1: L.append(f'v_add_f32 {V(vTs)}, {V(vE)}, {e}')
            elif j > 1: L.append(f'v_add_f32 {V(vTs)}, {V(vTs)}, {e}')
            if j & 1: L.append(f'v_cvt_pk_bf16_f32 {V(p0 + (j >> 1))}, {V(vE + ((j-1) & 7))}, {e}')
    return L

def max_block(qb, m, t):
    s0 = vS + 16 * qb
    L = [f'v_max3_f32 {V(m)}, {V(s0)}, {V(s0+1)}, {V(s0+2)}', f'v_max3_f32 {V(t)}, {V(s0+3)}, {V(s0+4)}, {V(s0+5)}']
    for k in range(6, 14, 4):
        L += [f'v_max3_f32 {V(m)}, {V(m)}, {V(s0+k)}, {V(s0+k+1)}', f'v_max3_f32 {V(t)}, {V(t)}, {V(s0+k+2)}, {V(s0+k+3)}']
    L += [f'v_max3_f32 {V(m)}, {V(m)}, {V(s0+14)}, {V(s0+15)}', f'v_max_f32 {V(m)}, {V(m)}, {V(t)}', f'v_mov_b32 {V(t)}, {V(m)}',
          's_nop 1', f'v_permlane32_swap_b32 {V(m)}, {V(t)}', 's_nop 0', f'v_max_f32 {V(m)}, {V(m)}, {V(t)}']
    return L

def sm_stream(qb, first, tag):
    s0 = vS + 16 * qb; n0 = vN + 16 * qb
    if first:
        m, t = vE, vE + 1
        L = max_block(qb, m, t)
        for i in range(16): L.append(f'v_sub_f32 {V(s0+i)}, {V(s0+i)}, {V(m)}')
        for i in range(16): L.append(f'v_sub_f32 {V(n0+i)}, 0, {V(m)}')
        L += exp_block(qb)
        L.append(f'v_mov_b32 {V(vL+qb)}, {V(vTs)}')
        return L
    L = exp_block(qb)
    L += [f'v_cmp_lt_f32 vcc, {S(sThr)}, {V(vTs)}', f's_cbranch_vccnz SLOW{qb}', f'BACK{qb}:',
          f'v_add_f32 {V(vL+qb)}, {V(vL+qb)}, {V(vTs)}']
    return L

def slow_path(qb):
    s0 = vS + 16 * qb; n0 = vN + 16 * qb
    m, t, sc = vE, vE + 1, vE + 2
    L = [f'SLOW{qb}:', 's_nop 7', 's_nop 7']
    L += max_block(qb, m, t)
    L += [f'v_max_f32 {V(m)}, 0, {V(m)}', f'v_exp_f32 {V(sc)}, -{V(m)}', f'v_sub_f32 {V(t)}, {V(n0)}, {V(m)}']
    for i in range(16): L.append(f'v_mov_b32 {V(n0+i)}, {V(t)}')
    for i in range(16): L.append(f'v_sub_f32 {V(s0+i)}, {V(s0+i)}, {V(m)}')
    L.append(f'v_mul_f32 {V(vL+qb)}, {V(vL+qb)}, {V(sc)}')
    for a in range(4):
        for i in range(0, 16, 4):
            o = Oacc(a, qb) + i
            for k in range(4): L.append(f'v_accvgpr_read_b32 {V(vE+4+k)}, {A(o+k)}')
            for k in range(4): L.append(f'v_mul_f32 {V(vE+4+k)}, {V(vE+4+k)}, {V(sc)}')
            for k in range(4): L.append(f'v_accvgpr_write_b32 {A(o+k)}, {V(vE+4+k)}')
    L += exp_block(qb)
    L += ['s_nop 3', f's_branch BACK{qb}']
    return L

def tile(first, pre):
    L = soff_calc(sSo, 2)
    L += ['s_waitcnt vmcnt(24)']
    if pre:
        L += [f'v_add_u32 {V(vAd+3)}, {S(sM0K)}, {V(vL16)}'] + flush(0)
    for s in range(8):
        if s == 0: L.append(f'ds_read_b128 {V(vKf,4)}, {V(vKb)}')
        else:
            L += [f'v_xor_b32 {V(vAd + (s&1))}, {32*s}, {V(vKb)}', f'ds_read_b128 {V(vKf+4*s,4)}, {V(vAd + (s&1))}']
    L.append(f'v_xor_b32 {V(vKb)}, 0x4000, {V(vKb)}')
    mf = []
    for qb in range(3):
        for s in range(8):
            d = V(vS + 16*qb, 16)
            c = d if s else ('0' if first else V(vN + 16*qb, 16))
            mf.append(f'{MF} {d}, {V(vKf+4*s,4)}, {Qreg(qb,s)}, {c}')
    gaps = [[] for _ in range(24)]
    for s in range(1, 8): gaps[s-1].append(f's_waitcnt lgkmcnt({7-s})')
    spread_groups(gaps, dma_groups(False), 7, 10)
    spread(gaps, sm_stream(0, first, 0), 10, 17)
    spread(gaps, sm_stream(1, first, 1), 18, 23)
    L += weave(mf, gaps, ['s_waitcnt lgkmcnt(7)'])
    L += ['s_waitcnt vmcnt(24)']
    if pre: L += flush(1)
    for a in range(1, 4): L.append(f'v_xor_b32 {V(vAd + a - 1)}, {64*a}, {V(vVb)}')
    for a in range(4):
        for u in range(2):
            for wp in range(2):
                ad = V(vVb) if a == 0 else V(vAd + a - 1)
                L.append(f'ds_read_b64_tr_b16 {V(vVf + (a*2+u)*4 + 2*wp, 2)}, {ad} offset:{4096*u + 2048*wp}')
    L.append(f'v_xor_b32 {V(vVb)}, 0x4000, {V(vVb)}')
    if pre:
        L += ['s_waitcnt lgkmcnt(0)']
        for g in dma_groups(True): L += g
        L += ['s_waitcnt vmcnt(16)'] + flush(2) + flush(3) + ['s_waitcnt lgkmcnt(0)']
    mf = []
    for qb in range(3):
        for a in range(4):
            for u in range(2):
                d = A(Oacc(a, qb), 16)
                c = '0' if (first and u == 0) else d
                mf.append(f'{MF} {d}, {V(vVf+(a*2+u)*4,4)}, {V(vP+8*qb+4*u,4)}, {c}')
    gaps = [[] for _ in range(24)]
    if not pre:
        for k in range(1, 8): gaps[k-1].append(f's_waitcnt lgkmcnt({14-2*k})')
        spread_groups(gaps, dma_groups(True), 7, 10)
    spread(gaps, sm_stream(2, first, 2), 0, 14)
    L += weave(mf, gaps, ['s_waitcnt lgkmcnt(14)'])
    L += [f's_xor_b32 {S(sM0K)}, {S(sM0K)}, 0x4000', f's_add_u32 {S(sT)}, {S(sT)}, 1']
    return L

def combine():
    L = ['COMBINE:']
    L += read_q(LDS_Q2)
    for qb in range(3):
        L += [f'v_mov_b32 {V(vE)}, {V(vL+qb)}', 's_nop 1', f'v_permlane32_swap_b32 {V(vE)}, {V(vL+qb)}', 's_nop 0',
              f'v_add_f32 {V(vN+16*qb+1)}, {V(vE)}, {V(vL+qb)}']
    L += [f's_mul_i32 {S(sTmp)}, {S(sWv)}, 768', f'v_add_u32 {V(vAd)}, {S(sTmp)}, {V(vStat)}']
    for qb in range(3):
        L.append(f'ds_write_b64 {V(vAd)}, {V(vN+16*qb,2)} offset:{256*qb}')
    L += ['s_waitcnt lgkmcnt(0)', 's_barrier']
    for r in range(4):
        L += [f's_xor_b32 {S(sTmp)}, {S(sWv)}, {r}', f's_mul_i32 {S(sTmp)}, {S(sTmp)}, 768', f'v_add_u32 {V(vAd)}, {S(sTmp)}, {V(vStat)}']
        for qb in range(3):
            L.append(f'ds_read_b64 {V(vKf + (qb*4+r)*2, 2)}, {V(vAd)} offset:{256*qb}')
    L += ['s_waitcnt lgkmcnt(0)']
    F = vP
    for qb in range(3):
        n = lambda r: V(vKf + (qb*4+r)*2); l = lambda r: V(vKf + (qb*4+r)*2 + 1)
        L += [f'v_min3_f32 {V(vE)}, {n(0)}, {n(1)}, {n(2)}', f'v_min_f32 {V(vE)}, {V(vE)}, {n(3)}']
        for r in range(4): L.append(f'v_sub_f32 {n(r)}, {V(vE)}, {n(r)}')
        for r in range(4): L.append(f'v_exp_f32 {n(r)}, {n(r)}')
        L += ['s_nop 0', f'v_mul_f32 {V(vE+1)}, {n(0)}, {l(0)}']
        for r in range(1, 4): L.append(f'v_fma_f32 {V(vE+1)}, {n(r)}, {l(r)}, {V(vE+1)}')
        L += [f'v_rcp_f32 {V(vE+1)}, {V(vE+1)}', 's_nop 0']
        for r in range(4): L.append(f'v_mul_f32 {V(F+qb*4+r)}, {n(r)}, {V(vE+1)}')
    for qb in range(3):
        for i in range(16): L.append(f'v_accvgpr_read_b32 {V(vS+16*qb+i)}, {A(Oacc(0,qb)+i)}')
        for i in range(16): L.append(f'v_mul_f32 {V(vS+16*qb+i)}, {V(vS+16*qb+i)}, {V(F+qb*4)}')
    L += [f's_mul_i32 {S(sTmp)}, {S(sWv)}, 6144', f's_add_u32 {S(sTmp)}, {S(sTmp)}, {LDS_XR}', f'v_add_u32 {V(vAd+1)}, {S(sTmp)}, {V(vL16)}']
    for r in range(1, 4):
        L += [f's_xor_b32 {S(sTmp)}, {S(sWv)}, {r}', f's_mul_i32 {S(sTmp)}, {S(sTmp)}, 6144', f's_add_u32 {S(sTmp)}, {S(sTmp)}, {LDS_XR}',
              f'v_add_u32 {V(vAd)}, {S(sTmp)}, {V(vL16)}']
        for qb in range(3):
            for i in range(16): L.append(f'v_accvgpr_read_b32 {V(vN+16*qb+i)}, {A(Oacc(r,qb)+i)}')
            for i in range(8): L.append(f'v_cvt_pk_bf16_f32 {V(vVf+8*qb+i)}, {V(vN+16*qb+2*i)}, {V(vN+16*qb+2*i+1)}')
        if r > 1: L += ['s_barrier']
        for qb in range(3):
            for u in range(2): L.append(f'ds_write_b128 {V(vAd)}, {V(vVf+8*qb+4*u,4)} offset:{(qb*2+u)*1024}')
        L += ['s_waitcnt lgkmcnt(0)', 's_barrier']
        for qb in range(3):
            for u in range(2): L.append(f'ds_read_b128 {V(vKf+8*qb+4*u,4)}, {V(vAd+1)} offset:{(qb*2+u)*1024}')
        L += ['s_waitcnt lgkmcnt(0)']
        for qb in range(3):
            for i in range(8):
                L += [f'v_lshlrev_b32 {V(vE)}, 16, {V(vKf+8*qb+i)}', f'v_and_b32 {V(vE+1)}, 0xffff0000, {V(vKf+8*qb+i)}',
                      f'v_fma_f32 {V(vS+16*qb+2*i)}, {V(vE)}, {V(F+qb*4+r)}, {V(vS+16*qb+2*i)}',
                      f'v_fma_f32 {V(vS+16*qb+2*i+1)}, {V(vE+1)}, {V(F+qb*4+r)}, {V(vS+16*qb+2*i+1)}']
    for qb in range(3):
        for i in range(8): L.append(f'v_cvt_pk_bf16_f32 {V(vVf+8*qb+i)}, {V(vS+16*qb+2*i)}, {V(vS+16*qb+2*i+1)}')
        L.append(f's_add_u32 {S(sTmp)}, {S(sOb)}, {qb*262144}')
        for u in range(2):
            L.append(f'buffer_store_dwordx4 {V(vVf+8*qb+4*u,4)}, {V(vL16)}, {S(sO,4)}, {S(sTmp)} offen offset:{1024*u}')
    L += [f's_add_u32 {S(sOb)}, {S(sOb)}, {12*262144}', 's_nop 1']
    return L

def k1():
    L = k1_prologue()
    L += k1_qproj()
    L += stamp()
    L += tile(True, True)
    L += ['LOOP:'] + tile(False, False)
    L += [f's_and_b32 {S(sTmp)}, {S(sT)}, 7', f's_cmp_lg_u32 {S(sTmp)}, 0', 's_cbranch_scc1 LOOP', 's_nop 7', 's_nop 7']
    if OPT['stamps']:
        L += [f's_cmp_eq_u32 {S(sT)}, 8', 's_cbranch_scc0 NOST1'] + stamp() + ['NOST1:'] + stamp()
    L += combine()
    L += [f's_cmp_eq_u32 {S(sT)}, 16', 's_cbranch_scc1 K1_FIN']
    L += stamp()
    L += tile(True, False)
    L += ['s_branch LOOP']
    for qb in range(3): L += slow_path(qb)
    L += ['K1_FIN:'] + stamp_dump(0, sWv, sTmp)
    L += ['K1_END:', 's_endpgm']
    return L

def k2():
    sWo, sOs, sOut = 4, 8, 12
    sWv, sBr, sMt, sNt, sTmp, sTmp2, sG, sM, sWs, sOsA, sOsB = 24, 25, 26, 27, 28, 29, 30, 31, 32, 33, 34
    vL16, vOffW, vRd, vAd = 0, 1, 2, 4
    vOf, vWf = 16, 144
    L = ['s_cmp_ge_u32 s2, 240', 's_cbranch_scc1 K2_END',
         's_load_dwordx2 s[40:41], s[0:1], 32', 's_load_dwordx2 s[42:43], s[0:1], 72',
         f's_load_dwordx2 {S(sOut,2)}, s[0:1], 80', f's_load_dwordx2 {S(sOs,2)}, s[0:1], 96',
         ] + stamp_init(65536) + [
         's_and_b32 s3, s2, 7', f's_lshr_b32 {S(sTmp)}, s2, 3', f's_lshr_b32 {S(sBr)}, s3, 2',
         f's_mul_i32 {S(sTmp2)}, {S(sTmp)}, 52', f's_lshr_b32 {S(sTmp2)}, {S(sTmp2)}, 8',
         f's_mul_i32 {S(sNt)}, {S(sTmp2)}, 5', f's_sub_u32 {S(sNt)}, {S(sTmp)}, {S(sNt)}',
         f's_bfe_u32 {S(sMt)}, s3, 0x10001', f's_mul_i32 {S(sMt)}, {S(sMt)}, 6', f's_add_u32 {S(sMt)}, {S(sMt)}, {S(sTmp2)}',
         's_and_b32 s3, s3, 1', 's_mul_i32 s3, s3, 5', f's_add_u32 {S(sNt)}, {S(sNt)}, s3',
         'v_lshrrev_b32 v10, 6, v0', 'v_and_b32 v11, 63, v0', 's_nop 0', f'v_readfirstlane_b32 {S(sWv)}, v10',
         'v_lshlrev_b32 v0, 4, v11',
         'v_bfe_u32 v12, v11, 4, 1', 'v_lshlrev_b32 v12, 2, v12', 'v_and_b32 v13, 7, v11', 'v_xor_b32 v12, v12, v13',
         'v_lshlrev_b32 v12, 4, v12', 'v_lshrrev_b32 v13, 3, v11', 'v_mul_u32_u24 v13, 0x500, v13', f'v_add_u32 {V(vOffW)}, v12, v13',
         'v_lshrrev_b32 v12, 5, v11', 'v_bfe_u32 v13, v11, 2, 2', 'v_lshlrev_b32 v14, 3, v12', 'v_add_u32 v14, v14, v13',
         'v_lshlrev_b32 v14, 7, v14', 'v_lshrrev_b32 v13, 1, v13', f's_and_b32 {S(sTmp)}, {S(sWv)}, 1', f'v_xor_b32 v13, {S(sTmp)}, v13',
         'v_lshlrev_b32 v13, 6, v13', 'v_add_u32 v14, v14, v13',
         'v_and_b32 v13, 16, v11', 'v_lshlrev_b32 v13, 1, v13', 'v_add_u32 v14, v14, v13',
         'v_and_b32 v13, 1, v11', 'v_lshlrev_b32 v13, 4, v13', 'v_add_u32 v14, v14, v13',
         'v_and_b32 v13, 2, v11', 'v_lshlrev_b32 v13, 2, v13', 'v_add_u32 v14, v14, v13',
         f's_lshl_b32 {S(sM)}, {S(sWv)}, 15', f'v_add_u32 {V(vRd)}, {S(sM)}, v14', f'v_xor_b32 {V(vRd+1)}, 64, {V(vRd)}',
         'v_and_b32 v13, 31, v11', 'v_mul_u32_u24 v13, 0xa00, v13', 'v_lshlrev_b32 v12, 4, v12', 'v_add_u32 v5, v12, v13',
         's_waitcnt lgkmcnt(0)',
         f's_cmp_eq_u32 {S(sBr)}, 0', f's_cselect_b64 {S(sWo,2)}, s[40:41], s[42:43]',
         f's_and_b32 {S(sWo+1)}, {S(sWo+1)}, 0xffff', f's_mov_b32 {S(sWo+2)}, 5242880', f's_mov_b32 {S(sWo+3)}, 0x20000',
         f's_mul_i32 s3, {S(sBr)}, 6291456', f's_add_u32 {S(sOs)}, {S(sOs)}, s3', f's_addc_u32 {S(sOs+1)}, {S(sOs+1)}, 0',
         f's_and_b32 {S(sOs+1)}, {S(sOs+1)}, 0xffff', f's_mov_b32 {S(sOs+2)}, 6291456', f's_mov_b32 {S(sOs+3)}, 0x20000',
         f's_and_b32 {S(sOut+1)}, {S(sOut+1)}, 0xffff', f's_mov_b32 {S(sOut+2)}, 1966080', f's_mov_b32 {S(sOut+3)}, 0x20000',
         f's_mul_i32 {S(sWs)}, {S(sWv)}, 1310720', f's_lshl_b32 s3, {S(sNt)}, 7', f's_add_u32 {S(sWs)}, {S(sWs)}, s3',
         f's_lshr_b32 {S(sTmp)}, {S(sWv)}, 1', f's_lshl_b32 s3, {S(sMt)}, 1', f's_add_u32 s3, s3, {S(sTmp)}',
         f's_lshl_b32 {S(sOsA)}, s3, 18', f's_lshl_b32 {S(sTmp2)}, {S(sWv)}, 16', f's_add_u32 {S(sOsA)}, {S(sOsA)}, {S(sTmp2)}',
         f's_xor_b32 {S(sOsB)}, {S(sOsA)}, 0x40000',
         ]
    def issue(b):
        G = []
        for i in range(8):
            G.append([f's_add_u32 m0, {S(sM)}, {8192*b + 1024*i}', f's_add_u32 {S(sTmp)}, {S(sWs)}, {i*10240}',
                      f'buffer_load_dwordx4 {V(vOffW)}, {S(sWo,4)}, {S(sTmp)} offen lds'])
        for ks in range(4):
            for aq in range(2):
                G.append([f'buffer_load_dwordx4 {V(vOf + 32*b + (ks*2+aq)*4, 4)}, {V(vL16)}, {S(sOs,4)}, {S(sOsA+aq)} offen offset:{1024*ks}'])
        G[-1] += [f's_add_u32 {S(sWs)}, {S(sWs)}, 81920', f's_add_u32 {S(sOsA)}, {S(sOsA)}, 4096', f's_add_u32 {S(sOsB)}, {S(sOsB)}, 4096']
        return G
    for b in range(3):
        for g in issue(b): L += g
    for i in range(64): L.append(f'v_accvgpr_write_b32 {A(i)}, 0')
    def body(b, nxt, wait):
        l = [f's_waitcnt vmcnt({wait})']
        for ks in range(4):
            for an in range(2):
                for wp in range(2):
                    l.append(f'ds_read_b64_tr_b16 {V(vWf + (ks*2+an)*4 + 2*wp, 2)}, {V(vRd+an)} offset:{8192*b + 2048*ks + 512*wp}')
        mf = []
        for ks in range(4):
            for an in range(2):
                for aq in range(2):
                    d = A((an*2+aq)*16, 16)
                    mf.append(f'{MF} {d}, {V(vWf+(ks*2+an)*4,4)}, {V(vOf+32*b+(ks*2+aq)*4,4)}, {d}')
        gaps = [[] for _ in range(16)]
        for k in range(1, 8): gaps[2*k-1].append(f's_waitcnt lgkmcnt({14-2*k})')
        if nxt: spread_groups(gaps, issue((b + 3) % 4), 0, 15)
        return l + weave(mf, gaps, ['s_waitcnt lgkmcnt(14)'])
    L += [f's_mov_b32 {S(sG)}, 0', 'K2_LOOP:']
    for b in range(4): L += body(b, True, 32)
    L += [f's_add_u32 {S(sG)}, {S(sG)}, 1', f's_cmp_lt_u32 {S(sG)}, 3', 's_cbranch_scc1 K2_LOOP']
    L += body(0, True, 32) + body(1, False, 32) + body(2, False, 16) + body(3, False, 0)
    L += stamp() + ['s_nop 7', 's_nop 7', 's_barrier']
    for a in range(1, 4):
        an, aq = a >> 1, a & 1
        L += [f's_xor_b32 {S(sTmp)}, {S(sWv)}, {an | (aq << 1)}', f's_mul_i32 {S(sTmp)}, {S(sTmp)}, 12288', f'v_add_u32 {V(vAd)}, {S(sTmp)}, {V(vL16)}']
        for i in range(4): L.append(f'ds_write_b128 {V(vAd)}, {A(a*16+4*i,4)} offset:{(a-1)*4096 + 1024*i}')
    L += [f's_mul_i32 {S(sTmp)}, {S(sWv)}, 12288', f'v_add_u32 {V(vAd)}, {S(sTmp)}, {V(vL16)}']
    for i in range(16): L.append(f'v_accvgpr_read_b32 {V(16+i)}, {A(i)}')
    L += ['s_waitcnt lgkmcnt(0)', 's_barrier']
    for k in range(12): L.append(f'ds_read_b128 {V(32+4*k,4)}, {V(vAd)} offset:{1024*k}')
    L += [f's_lshr_b32 {S(sTmp)}, {S(sWv)}, 1', f's_lshl_b32 s3, {S(sMt)}, 1', f's_add_u32 s3, s3, {S(sTmp)}', 's_mul_i32 s3, s3, 81920',
          f's_mul_i32 {S(sTmp)}, {S(sBr)}, 1280', f's_add_u32 s3, s3, {S(sTmp)}', f's_lshl_b32 {S(sTmp)}, {S(sNt)}, 7', f's_add_u32 s3, s3, {S(sTmp)}',
          f's_and_b32 {S(sTmp)}, {S(sWv)}, 1', f's_lshl_b32 {S(sTmp)}, {S(sTmp)}, 6', f's_add_u32 s3, s3, {S(sTmp)}']
    L += ['s_waitcnt lgkmcnt(0)']
    for a in range(3):
        for i in range(16): L.append(f'v_add_f32 {V(16+i)}, {V(16+i)}, {V(32+16*a+i)}')
    for i in range(8): L.append(f'v_cvt_pk_bf16_f32 {V(80+i)}, {V(16+2*i)}, {V(17+2*i)}')
    for u in range(2): L.append(f'buffer_store_dwordx4 {V(80+4*u,4)}, v5, {S(sOut,4)}, s3 offen offset:{32*u}')
    L += stamp_dump(65536, sWv, sTmp)
    L += ['K2_END:', 's_endpgm']
    return L

def emit(kname, L, nv, acc):
    out = [f'.globl {kname}', '.p2align 8', f'.type {kname},@function', f'{kname}:']
    for t in L: out.append(t if is_label(t) else '    ' + t)
    desc = ['.p2align 6', f'.amdhsa_kernel {kname}', f'  .amdhsa_next_free_vgpr {nv}', '  .amdhsa_next_free_sgpr 102',
            f'  .amdhsa_accum_offset {acc}', '  .amdhsa_group_segment_fixed_size 0', '  .amdhsa_kernarg_size 104',
            '  .amdhsa_user_sgpr_count 2', '  .amdhsa_user_sgpr_kernarg_segment_ptr 1', '  .amdhsa_system_sgpr_workgroup_id_x 1',
            '.end_amdhsa_kernel']
    return out, desc

def main():
    a = k1(); b = k2()
    bad = check_seq(code_only(a), 'k1') + check_seq(code_only(b), 'k2')
    k1n, k2n = NAME + '_kernel', 'oproj_kernel'
    hdr = [f'; @launch kernel={k1n} grid=(256,1,1) block=(256,1,1) lds=163840',
           f'; @launch kernel={k2n} grid=(240,1,1) block=(256,1,1) lds=131072',
           '.amdgcn_target "amdgcn-amd-amdhsa--gfx950"', '.text']
    c1, d1 = emit(k1n, a, 512, 256); c2, d2 = emit(k2n, b, 256, 192)
    txt = '\n'.join(hdr + c1 + c2 + ['.section .rodata,"a"'] + d1 + d2) + '\n'
    open(sys.argv[1], 'w').write(txt)
    print('hazards', bad, 'lines', len(a), len(b))
main()
```

```python
import re

def expand(op):
    op = op.strip()
    op = op.lstrip('-')
    m = re.fullmatch(r'abs\((.*)\)', op)
    if m: op = m.group(1)
    m = re.fullmatch(r'([vas])\[(\d+):(\d+)\]', op)
    if m:
        return {(m.group(1), i) for i in range(int(m.group(2)), int(m.group(3)) + 1)}
    m = re.fullmatch(r'([vas])(\d+)', op)
    if m:
        return {(m.group(1), int(m.group(2)))}
    if op in ('vcc', 'm0', 'exec', 'scc'):
        return {(op, 0)}
    return set()

TRANS = ('v_exp_f32', 'v_log_f32', 'v_rcp_f32', 'v_rsq_f32', 'v_sqrt_f32')

class Ins:
    def __init__(self, text):
        self.text = text
        t = text.split(';')[0].strip()
        parts = t.split(None, 1)
        self.op = parts[0]
        rest = parts[1] if len(parts) > 1 else ''
        ops = [o.strip() for o in rest.split(',')] if rest else []
        if ops:
            last = ops[-1].split()
            self.mods = last[1:]
            ops[-1] = last[0] if last else ''
        else:
            self.mods = []
        self.ops = ops
        self.kind = None
        self.rd = set(); self.wr = set()
        self.A = self.B = self.C = self.D = set()
        op = self.op
        E = expand
        if op.startswith('v_mfma'):
            self.kind = 'mfma'
            self.D, self.A, self.B, self.C = E(ops[0]), E(ops[1]), E(ops[2]), E(ops[3])
            self.rd = self.A | self.B | self.C
            self.wr = self.D
            self.passes = 8 if '32x32' in op else 4
        elif op.startswith('v_'):
            self.kind = 'valu'
            self.wr = E(ops[0])
            for o in ops[1:]:
                self.rd |= E(o)
            if op.startswith(('v_fmac', 'v_dot2c', 'v_pk_fmac')):
                self.rd |= self.wr
            if op.startswith('v_permlane32_swap') or op.startswith('v_permlane16_swap'):
                self.rd = E(ops[0]) | E(ops[1]); self.wr = set(self.rd)
            if op.startswith(('v_add_co', 'v_sub_co', 'v_addc_co')):
                self.wr |= E(ops[1]); self.rd = set()
                for o in ops[2:]: self.rd |= E(o)
        elif op.startswith('ds_read'):
            self.kind = 'ds'; self.wr = E(ops[0]); self.rd = E(ops[1])
        elif op.startswith('ds_add_rtn'):
            self.kind = 'ds'; self.wr = E(ops[0]); self.rd = E(ops[1]) | E(ops[2])
        elif op.startswith('ds_write'):
            self.kind = 'ds'
            for o in ops: self.rd |= E(o)
        elif op.startswith('buffer_load') and 'lds' in self.mods:
            self.kind = 'vmem'; self.dma = True
            for o in ops: self.rd |= E(o)
            self.rd |= {('m0', 0)}
        elif op.startswith(('buffer_load', 'global_load')):
            self.kind = 'vmem'; self.wr = E(ops[0])
            for o in ops[1:]: self.rd |= E(o)
        elif op.startswith(('buffer_store', 'global_store', 'buffer_atomic', 'global_atomic')):
            self.kind = 'vmem'
            for o in ops: self.rd |= E(o)
            self.store = True
        elif op.startswith(('buffer_', 'global_')):
            self.kind = 'vmem'
        elif op.startswith('s_'):
            self.kind = 'salu'
            if ops and not op.startswith(('s_cmp', 's_cbranch', 's_branch', 's_waitcnt', 's_nop', 's_barrier', 's_sleep', 's_setprio', 's_bitcmp')):
                self.wr = E(ops[0])
                for o in ops[1:]: self.rd |= E(o)
            else:
                for o in ops: self.rd |= E(o)
        else:
            raise ValueError('unknown instr ' + text)
    def states(self):
        if self.op == 's_nop':
            return int(self.ops[0], 0) + 1
        return 1

def vg(s):
    return {r for r in s if r[0] in 'va'}
def sg(s):
    return {r for r in s if r[0] in ('s', 'vcc')}

def need(p, c):
    n = 0
    if p.kind == 'valu':
        w = vg(p.wr)
        if c.kind == 'mfma' and (w & c.rd): n = max(n, 2)
        if c.kind == 'valu':
            if p.op.startswith(TRANS) and not c.op.startswith(TRANS) and (w & c.rd): n = max(n, 1)
            if p.op.startswith(TRANS) and (w & c.rd): n = max(n, 1)
            if c.op.startswith('v_permlane') and (w & c.rd): n = max(n, 2)
            if c.op.startswith(('v_readfirstlane', 'v_readlane')) and (w & c.rd): n = max(n, 1)
            if 'dpp' in c.text or 'row_' in c.text or 'quad_perm' in c.text:
                if w & c.rd: n = max(n, 2)
            if sg(p.wr) & c.rd: n = max(n, 2)
        if c.kind == 'vmem' and (sg(p.wr) & c.rd): n = max(n, 5)
        if c.kind == 'salu' and (sg(p.wr) & c.rd) and not c.op.startswith('s_cbranch'): n = max(n, 1)
    if p.kind == 'mfma':
        big = {8: 12, 4: 8}[p.passes]
        if c.kind == 'mfma':
            if p.D & (c.A | c.B): n = max(n, big)
            if p.D & c.C and not (p.D == c.C and p.passes == c.passes): n = max(n, big - 2)
            if p.D & c.D and not (p.D == c.C): n = max(n, big - 2)
        elif c.kind in ('valu', 'ds', 'vmem'):
            if p.D & (c.rd | c.wr): n = max(n, big)
            if c.kind == 'valu' and (p.C & c.wr): n = max(n, {8: 7, 4: 3}[p.passes])
            if c.kind != 'valu' and (p.C & c.wr): n = max(n, {8: 7, 4: 3}[p.passes])
    if p.kind == 'salu':
        if ('m0', 0) in p.wr and getattr(c, 'dma', False): n = max(n, 1)
    if p.kind == 'vmem' and getattr(p, 'store', False) and ('x4' in p.op or 'x3' in p.op):
        if vg(p.rd) & c.wr: n = max(n, 2)
    if p.kind == 'ds' and p.op.startswith('ds_write') and ('b128' in p.op or 'b96' in p.op):
        if c.kind == 'valu' and vg(p.rd) & c.wr: n = max(n, 1)
    return n

def check_seq(texts, name=''):
    ins = [Ins(t) for t in texts]
    bad = 0
    for j, c in enumerate(ins):
        d = 0
        i = j - 1
        while i >= 0 and d < 22:
            p = ins[i]
            n = need(p, c)
            if n > d and p.kind == 'mfma':
                t = 0; lm = 0; lp = p.passes
                for q in ins[i+1:j]:
                    if q.kind == 'mfma':
                        t = max(t + 1, lm + lp); lm = t; lp = q.passes
                    else:
                        t += q.states()
                if t >= n: n = 0
            if n > d:
                print(f'HAZARD[{name}] need {n} have {d}: [{i}] {p.text}  ->  [{j}] {c.text}')
                bad += 1
            d += p.states()
            i -= 1
    return bad

def cost(t):
    op = t.split()[0]
    if op.startswith(TRANS): return 2
    if op.startswith('s_nop'): return int(t.split()[1], 0) + 1
    if op.startswith('buffer_load'): return 3
    if op.endswith(':'): return 0
    if op.startswith('s_'): return 0.5
    return 1

def spread(gaps, stream, g0, g1):
    tot = sum(cost(t) for t in stream)
    n = g1 - g0 + 1
    acc = 0.0
    for t in stream:
        g = g0 + min(n - 1, int(acc * n / tot + 1e-9)) if tot > 0 else g0
        gaps[g].append(t)
        acc += cost(t)

def weave(mfmas, gaps, pre=()):
    out = list(pre)
    for i, m in enumerate(mfmas):
        out.append(m)
        out.extend(gaps[i])
    return out

def is_label(t):
    return t.rstrip().endswith(':')

def code_only(lines):
    return [t for t in lines if not is_label(t) and not t.startswith(';') and not t.startswith('.')]
```

```python
import sys, struct, math
sys.path.insert(0, 'gen')
from asmlib import *

NAME = 'concat_heads__gqa_block_cached__mha_block_cached__near_ridge'
def f32(x): return '0x%08x' % struct.unpack('<I', struct.pack('<f', x))[0]
CSCALE = f32(128 ** -0.5 * math.log2(math.e))

OPT = dict(kvflag='nt', early=8, per=4, stamps=0, rot=0, half=0, qrot=1, nA=2, wxflag='', k2flag='', stflag='')
OPT.update(kpos=[1,4,7,10,13,16,19,22], vpos=[24,27,30,33,36,39,42,45], sm=[(10,19),(20,29),(30,39)], kw=40)
for a in sys.argv[2:]:
    k, v = a.split('=')
    OPT[k] = eval(v) if v[0] in '[(' else (v if not v.lstrip('-').isdigit() else int(v))
fl = lambda k: (' ' + OPT[k].replace('+', ' ')) if OPT[k] else ''
KVF, WXF, K2F, STF = fl('kvflag'), fl('wxflag'), fl('k2flag'), fl('stflag')

def R(f, a, n=1):
    return f'{f}{a}' if n == 1 else f'{f}[{a}:{a+n-1}]'
V = lambda a, n=1: R('v', a, n)
A = lambda a, n=1: R('a', a, n)
S = lambda a, n=1: R('s', a, n)
MF = 'v_mfma_f32_32x32x16_bf16'

sK, sV, sW, sX, sO = 4, 8, 12, 16, 20
sWv, sBr, sH, sBp, sT, sSo, sSo2, sM0K, sW8, sTmp, sTmp2 = 24, 25, 26, 27, 28, 29, 30, 31, 32, 33, 34
sWb, sXb, sWm, sXm, sThr, sOb, sQw, sRot = 35, 36, 37, 38, 39, 56, 57, 58
sCh, sCw, sCx = 44, 45, 46
sDbg = 60
sSt = 64
vL16, vKb, vVb, vOffK, vOffV = 0, 1, 2, 3, 7
vL, vTs, vAd, vE, vP, vS, vN, vKf, vVf, vQ2 = 8, 11, 12, 16, 24, 48, 96, 144, 176, 208
vOffW, vOffX, vWA, vXA = 240, 241, 243, 247
vStat = 255
def Qreg(qb, s):
    return A(192 + qb * 32 + 4 * s, 4) if qb < 2 else V(vQ2 + 4 * s, 4)
def Oacc(a, qb): return (a * 3 + qb) * 16
LDS_Q1, LDS_Q2, LDS_STAT, LDS_XR = 81920, 131072, 155648, 131072
SB = [0, 40960, 81920, 122880]
LDS_DUMMY = 158720

stamp_n = [0]
def stamp():
    if not OPT['stamps']: return []
    i = stamp_n[0]; stamp_n[0] += 1
    return [f's_memrealtime {S(sSt + 2 * i, 2)}']

def stamp_init(koff):
    if not OPT['stamps']: return []
    stamp_n[0] = 0
    return [f's_load_dwordx2 {S(sDbg,2)}, s[0:1], 96', 's_memtime s[96:97]'] + stamp()
def stamp_dump(koff, swv, stmp):
    if not OPT['stamps']: return []
    L = ['s_waitcnt vmcnt(0)'] + stamp() + ['s_memtime s[98:99]', 's_waitcnt lgkmcnt(0)']
    L += [f's_add_u32 {S(sDbg)}, {S(sDbg)}, {(16<<20) + koff}', f's_addc_u32 {S(sDbg+1)}, {S(sDbg+1)}, 0',
          f's_and_b32 {S(sDbg+1)}, {S(sDbg+1)}, 0xffff', f's_mov_b32 {S(sDbg+2)}, 65536', f's_mov_b32 {S(sDbg+3)}, 0x20000',
          f's_lshl_b32 {S(stmp)}, s2, 2', f's_add_u32 {S(stmp)}, {S(stmp)}, {S(swv)}', f's_lshl_b32 {S(stmp)}, {S(stmp)}, 6', 'v_mov_b32 v1, 0']
    for i in range(stamp_n[0]):
        L += [f'v_mov_b32 v2, {S(sSt+2*i)}', f'buffer_store_dword v2, v1, {S(sDbg,4)}, {S(stmp)} offen offset:{4*i}']
    L += ['s_sub_u32 s98, s98, s96', 'v_mov_b32 v2, s98', f'buffer_store_dword v2, v1, {S(sDbg,4)}, {S(stmp)} offen offset:60']
    L += ['s_getreg_b32 s98, hwreg(HW_REG_XCC_ID)', 'v_mov_b32 v2, s98', f'buffer_store_dword v2, v1, {S(sDbg,4)}, {S(stmp)} offen offset:56']
    return L

def k1_prologue():
    L = [
        f's_cmp_ge_u32 s2, {128 if OPT["half"] else 256}', 's_cbranch_scc1 K1_END',
        's_load_dwordx8 s[40:47], s[0:1], 0', 's_load_dwordx8 s[48:55], s[0:1], 40',
        f's_load_dwordx2 {S(sO,2)}, s[0:1], 96',
    ]
    L += stamp_init(0)
    L += [
        's_and_b32 s3, s2, 7', f's_lshr_b32 {S(sTmp)}, s2, 3', f's_lshr_b32 {S(sBr)}, s3, 2',
        's_and_b32 s3, s3, 3', 's_lshl_b32 s3, s3, 3', f's_and_b32 {S(sH)}, {S(sTmp)}, 7',
        f's_add_u32 {S(sH)}, {S(sH)}, s3', f's_lshr_b32 {S(sBp)}, {S(sTmp)}, 3',
        'v_lshrrev_b32 v20, 6, v0', 'v_and_b32 v21, 63, v0', 's_nop 0',
        f'v_readfirstlane_b32 {S(sWv)}, v20',
        'v_lshlrev_b32 v0, 4, v21',
        'v_lshrrev_b32 v22, 4, v21',
        'v_and_b32 v23, 15, v21',
        'v_xor_b32 v24, v23, v22', 'v_lshlrev_b32 v24, 4, v24', 'v_lshlrev_b32 v25, 8, v22',
        f'v_add_u32 {V(vOffK)}, v24, v25',
        f'v_xor_b32 {V(vOffK+1)}, 64, {V(vOffK)}', f'v_xor_b32 {V(vOffK+2)}, 0x80, {V(vOffK)}',
        f'v_xor_b32 {V(vOffK+3)}, 0xc0, {V(vOffK)}',
        'v_lshlrev_b32 v24, 2, v22', 'v_xor_b32 v24, v23, v24', 'v_lshlrev_b32 v24, 4, v24',
        f'v_add_u32 {V(vOffV)}, v24, v25', 'v_lshlrev_b32 v25, 13, v22', f'v_add_u32 {V(vOffW)}, v24, v25',
        'v_and_b32 v24, 7, v21', 'v_xor_b32 v24, v24, v22', 'v_lshlrev_b32 v24, 4, v24',
        'v_lshrrev_b32 v25, 3, v21', 'v_mul_u32_u24 v25, 0x500, v25', f'v_add_u32 {V(vOffX)}, v24, v25',
        f'v_xor_b32 {V(vOffX+1)}, 64, {V(vOffX)}',
        f's_lshl_b32 {S(sW8)}, {S(sWv)}, 13', f's_lshl_b32 {S(sM0K)}, {S(sWv)}, 15',
        f's_lshl_b32 {S(sWb)}, {S(sWv)}, 17', f's_lshl_b32 {S(sWm)}, {S(sWv)}, 12',
        f's_mul_i32 {S(sXm)}, {S(sWv)}, 6144', f's_add_u32 {S(sXm)}, {S(sXm)}, 16384',
        f's_lshr_b32 {S(sTmp)}, {S(sWv)}, 1', f's_mul_i32 {S(sXb)}, {S(sTmp)}, 491520',
        f's_and_b32 {S(sTmp2)}, {S(sWv)}, 1', f's_mul_i32 s3, {S(sTmp2)}, 61440', f's_add_u32 {S(sXb)}, {S(sXb)}, s3',
        f's_mov_b32 {S(sThr)}, {f32(256.0)}',
        f's_mul_i32 {S(sQw)}, {S(sTmp)}, {LDS_Q2 - LDS_Q1}', f's_lshl_b32 s3, {S(sTmp2)}, 12',
        f's_add_u32 {S(sQw)}, {S(sQw)}, s3', f's_add_u32 {S(sQw)}, {S(sQw)}, {LDS_Q1}',
        'v_lshrrev_b32 v26, 5, v21', 'v_and_b32 v27, 31, v21', 'v_bfe_u32 v28, v21, 2, 2',
        'v_and_b32 v29, 16, v21', 'v_lshlrev_b32 v29, 1, v29',
        'v_and_b32 v30, 1, v21', 'v_lshlrev_b32 v30, 4, v30', 'v_add_u32 v29, v29, v30',
        'v_and_b32 v30, 2, v21', 'v_lshlrev_b32 v30, 2, v30', 'v_add_u32 v29, v29, v30',
        'v_xor_b32 v30, v26, v23', 'v_lshlrev_b32 v30, 4, v30', 'v_lshlrev_b32 v31, 8, v27',
        'v_add_u32 v30, v30, v31', f'v_add_u32 {V(vKb)}, {S(sM0K)}, v30',
        'v_lshlrev_b32 v30, 2, v26', 'v_add_u32 v30, v30, v28', 'v_lshlrev_b32 v30, 8, v30',
        f'v_xor_b32 v31, {S(sWv)}, v28', 'v_lshlrev_b32 v31, 6, v31', 'v_add3_u32 v30, v30, v31, v29',
        f'v_add_u32 v30, {S(sM0K)}, v30', f'v_add_u32 {V(vVb)}, 0x2000, v30',
        'v_lshlrev_b32 v30, 3, v26', 'v_add_u32 v30, v30, v28', 'v_lshlrev_b32 v30, 8, v30',
        f's_lshl_b32 s3, {S(sTmp2)}, 1', 'v_xor_b32 v31, s3, v28', 'v_lshlrev_b32 v31, 6, v31',
        f'v_add3_u32 {V(vWA)}, v30, v31, v29', f'v_xor_b32 {V(vWA+1)}, 64, {V(vWA)}',
        f'v_add_u32 {V(vWA+2)}, {SB[2]}, {V(vWA)}', f'v_add_u32 {V(vWA+3)}, {SB[2]}, {V(vWA+1)}',
        f's_mul_i32 s3, {S(sTmp)}, 12288', 's_add_u32 s3, s3, 16384',
        'v_bfe_u32 v30, v21, 1, 3', 'v_xor_b32 v30, v30, v26', 'v_lshlrev_b32 v30, 4, v30',
        'v_lshlrev_b32 v31, 7, v27', f'v_add3_u32 {V(vXA)}, v30, v31, s3',
    ]
    for ks in range(1, 4):
        L += [f'v_xor_b32 {V(vXA+ks)}, {32*ks}, {V(vXA)}']
    for ks in range(4):
        L += [f'v_add_u32 {V(vXA+4+ks)}, {SB[2]}, {V(vXA+ks)}']
    L += [f'v_lshlrev_b32 {V(vStat)}, 5, v27', f'v_add_u32 {V(vStat)}, {LDS_STAT}, {V(vStat)}']
    L += [
        's_waitcnt lgkmcnt(0)',
        f's_cmp_eq_u32 {S(sBr)}, 0',
        's_cselect_b64 s[40:41], s[40:41], s[48:49]', 's_cselect_b64 s[42:43], s[42:43], s[50:51]',
        's_cselect_b64 s[44:45], s[44:45], s[52:53]', 's_cselect_b64 s[46:47], s[46:47], s[54:55]',
        f's_lshl_b32 s3, {S(sBp)}, 5', f's_add_u32 s3, s3, {S(sH)}', 's_lshl_b32 s3, s3, 18',
        f's_add_u32 {S(sK)}, s42, s3', f's_addc_u32 {S(sK+1)}, s43, 0', f's_and_b32 {S(sK+1)}, {S(sK+1)}, 0xffff',
        f's_sub_u32 {S(sK+2)}, 0x4000000, s3', f's_mov_b32 {S(sK+3)}, 0x20000',
        f's_add_u32 {S(sV)}, s44, s3', f's_addc_u32 {S(sV+1)}, s45, 0', f's_and_b32 {S(sV+1)}, {S(sV+1)}, 0xffff',
        f's_sub_u32 {S(sV+2)}, 0x4000000, s3', f's_mov_b32 {S(sV+3)}, 0x20000',
        f's_lshl_b32 s3, {S(sH)}, 8',
        f's_add_u32 {S(sW)}, s46, s3', f's_addc_u32 {S(sW+1)}, s47, 0', f's_and_b32 {S(sW+1)}, {S(sW+1)}, 0xffff',
        f's_sub_u32 {S(sW+2)}, 5242880, s3', f's_mov_b32 {S(sW+3)}, 0x20000',
        f's_mul_i32 s3, {S(sBp)}, 122880',
        f's_add_u32 {S(sX)}, s40, s3', f's_addc_u32 {S(sX+1)}, s41, 0', f's_and_b32 {S(sX+1)}, {S(sX+1)}, 0xffff',
        f's_sub_u32 {S(sX+2)}, 983040, s3', f's_mov_b32 {S(sX+3)}, 0x20000',
        f's_mul_i32 s3, {S(sBr)}, 6291456',
        f's_add_u32 {S(sO)}, {S(sO)}, s3', f's_addc_u32 {S(sO+1)}, {S(sO+1)}, 0', f's_and_b32 {S(sO+1)}, {S(sO+1)}, 0xffff',
        f's_mov_b32 {S(sO+2)}, 6291456', f's_mov_b32 {S(sO+3)}, 0x20000',
        f's_mul_i32 {S(sOb)}, {S(sBp)}, 768', f's_lshl_b32 s3, {S(sH)}, 3', f's_add_u32 {S(sOb)}, {S(sOb)}, s3',
        f's_lshl_b32 s3, {S(sWv)}, 1', f's_add_u32 {S(sOb)}, {S(sOb)}, s3', f's_lshl_b32 {S(sOb)}, {S(sOb)}, 10',
        f's_mov_b32 {S(sT)}, 0',
    ]
    if OPT['rot']:
        L += [f's_lshr_b32 {S(sRot)}, s2, 3', f's_and_b32 {S(sRot)}, {S(sRot)}, 7']
    else:
        L += [f's_mov_b32 {S(sRot)}, 0']
    return L

def stage_dma(j):
    sb = SB[j % 4]; G = []
    for i in range(4):
        G.append([f's_add_u32 m0, {S(sWm)}, {sb + 1024*i}', f's_add_u32 {S(sTmp)}, {S(sCw)}, {i*32768}',
                  f'buffer_load_dwordx4 {V(vOffW)}, {S(sW,4)}, {S(sTmp)} offen{WXF} lds'])
    for i in range(6):
        G.append([f's_add_u32 m0, {S(sXm)}, {sb + 1024*i}', f's_add_u32 {S(sTmp)}, {S(sCx)}, {i*10240}',
                  f'buffer_load_dwordx4 {V(vOffX + (i&1))}, {S(sX,4)}, {S(sTmp)} offen{WXF} lds'])
    G[-1] += [f's_add_u32 {S(sCh)}, {S(sCh)}, 1', f's_cmp_eq_u32 {S(sCh)}, 10', f's_cselect_b32 {S(sCh)}, 0, {S(sCh)}',
              f's_lshl_b32 {S(sCw)}, {S(sCh)}, 19', f's_add_u32 {S(sCw)}, {S(sCw)}, {S(sWb)}',
              f's_lshl_b32 {S(sCx)}, {S(sCh)}, 7', f's_add_u32 {S(sCx)}, {S(sCx)}, {S(sXb)}']
    return G

def soff_calc(dst, tadd):
    return [f's_add_u32 {S(sTmp)}, {S(sT)}, {tadd}', f's_lshr_b32 {S(sTmp2)}, {S(sTmp)}, 3', f's_lshl_b32 {S(sTmp2)}, {S(sTmp2)}, 25',
            f's_add_u32 {S(sTmp)}, {S(sTmp)}, {S(sRot)}',
            f's_and_b32 {S(sTmp)}, {S(sTmp)}, 7', f's_lshl_b32 {S(sTmp)}, {S(sTmp)}, 15', f's_add_u32 {S(dst)}, {S(sTmp)}, {S(sTmp2)}',
            f's_add_u32 {S(dst)}, {S(dst)}, {S(sW8)}', f's_add_u32 {S(dst+1)}, {S(dst)}, 4096']

def kv_pre(n):
    p, i = n >> 3, n & 7
    so = 40 + 2 * (p >> 1) + (i >> 2)
    voff = vOffK + (i & 3) if p % 2 == 0 else vOffV
    srd = sK if p % 2 == 0 else sV
    return [f'buffer_load_dwordx4 {A(32*p + 4*i, 4)}, {V(voff)}, {S(srd,4)}, {S(so)} offen offset:{1024*(i&3)}{KVF}']

def spread_groups(gaps, groups, g0, g1):
    n = g1 - g0 + 1
    for k, g in enumerate(groups):
        gaps[g0 + (k * n) // len(groups)].extend(g)

lab_n = [0]
def lab(p='L'):
    lab_n[0] += 1
    return f'{p}{lab_n[0]}'

def k1_qproj():
    L = []
    L += soff_calc(40, 0) + soff_calc(42, 1)
    if OPT['qrot']:
        L += [f's_mul_i32 {S(sCh)}, {S(sBp)}, 5', f's_add_u32 {S(sCh)}, {S(sCh)}, 1', f's_lshr_b32 {S(sCh)}, {S(sCh)}, 1',
              f's_and_b32 {S(sTmp)}, {S(sH)}, 7', f's_add_u32 {S(sCh)}, {S(sCh)}, {S(sTmp)}',
              f's_sub_u32 {S(sTmp)}, {S(sCh)}, 10', f's_cmp_ge_u32 {S(sCh)}, 10', f's_cselect_b32 {S(sCh)}, {S(sTmp)}, {S(sCh)}']
    else:
        L += [f's_mov_b32 {S(sCh)}, 0']
    L += [f's_lshl_b32 {S(sCw)}, {S(sCh)}, 19', f's_add_u32 {S(sCw)}, {S(sCw)}, {S(sWb)}',
          f's_lshl_b32 {S(sCx)}, {S(sCh)}, 7', f's_add_u32 {S(sCx)}, {S(sCx)}, {S(sXb)}']
    L += [f's_cmp_lt_u32 {S(sBp)}, {OPT["nA"]}', 's_cselect_b64 vcc, -1, 0']
    for j in range(3):
        for g in stage_dma(j): L += g
    sk = lab()
    L += [f's_cbranch_vccz {sk}']
    for n in range(32): L += kv_pre(n)
    L += [f'{sk}:']
    Wf = lambda ks, d: 144 + ks * 8 + d * 4
    Xf = lambda ks, qb: 176 + ks * 12 + qb * 4
    late = {7: range(0, 11), 8: range(11, 22), 9: range(22, 32)}
    for j in range(10):
        base = 10 * min(2, 9 - j)
        extraA = 32 if j < 3 else 0
        extraB = {8: 11, 9: 22}.get(j, 0)
        if extraA != extraB:
            l1, l2 = lab(), lab()
            L += [f's_cbranch_vccz {l1}', f's_waitcnt vmcnt({base + extraA})', f's_branch {l2}', f'{l1}:', f's_waitcnt vmcnt({base + extraB})', f'{l2}:']
        else:
            L += [f's_waitcnt vmcnt({base})']
        L += ['s_barrier']
        if j in (0, 1, 3, 6, 9) and OPT['stamps']: L += stamp() + ['s_waitcnt lgkmcnt(0)']
        b = j % 4; hi = b >> 1; off = (b & 1) * 40960
        def reads(ks):
            r = []
            for d in range(2):
                for wp in range(2):
                    r.append(f'ds_read_b64_tr_b16 {V(Wf(ks,d) + 2*wp, 2)}, {V(vWA + 2*hi + d)} offset:{off + 4096*ks + 1024*wp}')
            for qb in range(3):
                r.append(f'ds_read_b128 {V(Xf(ks,qb), 4)}, {V(vXA + 4*hi + ks)} offset:{off + 4096*qb}')
            return r
        L += reads(0) + reads(1)
        groups = []
        if j + 3 < 10:
            groups = stage_dma(j + 3)
        else:
            for n in late[j]:
                sk = lab()
                groups.append([f's_cbranch_vccnz {sk}'] + kv_pre(n) + [f'{sk}:'])
        mf = []; gaps = [[] for _ in range(24)]
        for ks in range(4):
            for d in range(2):
                for qb in range(3):
                    acc = V(48 + (d * 3 + qb) * 16, 16)
                    c = '0' if (j == 0 and ks == 0) else acc
                    mf.append(f'{MF} {acc}, {V(Wf(ks,d),4)}, {V(Xf(ks,qb),4)}, {c}')
        spread(gaps, reads(2), 0, 4); spread(gaps, reads(3), 6, 10)
        gaps[5].append('s_waitcnt lgkmcnt(7)'); gaps[11].append('s_waitcnt lgkmcnt(7)'); gaps[17].append('s_waitcnt lgkmcnt(0)')
        spread_groups(gaps, groups, 0, 22)
        L += weave(mf, gaps, ['s_waitcnt lgkmcnt(7)'])
    L += ['s_nop 7', 's_nop 3', f'v_add_u32 {V(vAd)}, {S(sQw)}, {V(vL16)}']
    for d in range(2):
        for qb in range(3):
            a0 = 48 + (d * 3 + qb) * 16
            for i in range(16): L.append(f'v_mul_f32 {V(a0+i)}, {CSCALE}, {V(a0+i)}')
            t0 = 144 + (d * 3 + qb) * 8
            for i in range(8): L.append(f'v_cvt_pk_bf16_f32 {V(t0+i)}, {V(a0+2*i)}, {V(a0+2*i+1)}')
            for u in range(2):
                L.append(f'ds_write_b128 {V(vAd)}, {V(t0+4*u,4)} offset:{(qb*8 + 2*d + u)*1024}')
    L += ['s_waitcnt lgkmcnt(0)', 's_barrier']
    L += read_q(LDS_Q1)
    L += ['s_waitcnt lgkmcnt(0)', 's_barrier']
    return L

def read_q(base):
    L = [f'v_add_u32 {V(vAd)}, {base}, {V(vL16)}']
    for qb in range(3):
        for s in range(8):
            L.append(f'ds_read_b128 {Qreg(qb,s)}, {V(vAd)} offset:{(qb*8+s)*1024}')
    return L

def flush(p):
    return [f'ds_write_b128 {V(vAd+3)}, {A(32*p + 4*i, 4)} offset:{8192*p + 1024*i}' for i in range(8)]

def dma_groups(isV):
    G = []
    srd = sV if isV else sK
    for i in range(8):
        g = []
        if i % 4 == 0 and not isV:
            g += [f's_add_u32 m0, {S(sM0K)}, {4096*(i>>2)}', 's_nop 0']
        if i % 4 == 0 and isV:
            g += [f's_add_u32 {S(sTmp)}, {S(sM0K)}, {8192 + 4096*(i>>2)}', f's_and_b32 {S(sTmp2)}, {S(sT)}, 7', f's_cmp_eq_u32 {S(sTmp2)}, 7',
                  f's_cselect_b32 m0, {LDS_DUMMY}, {S(sTmp)}', f's_cselect_b32 {S(sSo + (i>>2))}, 0x7fff0000, {S(sSo + (i>>2))}']
        voff = vOffV if isV else vOffK + (i & 3)
        g.append(f'buffer_load_dwordx4 {V(voff)}, {S(srd,4)}, {S(sSo + (i>>2))} offen offset:{1024*(i&3)}{KVF} lds')
        G.append(g)
    return G

def exp_block(qb):
    s0 = vS + 16 * qb; p0 = vP + 8 * qb
    L = []
    for i in range(16 + 2):
        if i < 16: L.append(f'v_exp_f32 {V(vE + (i & 7))}, {V(s0 + i)}')
        j = i - 2
        if j >= 0:
            e = V(vE + (j & 7))
            if j == 1: L.append(f'v_add_f32 {V(vTs)}, {V(vE)}, {e}')
            elif j > 1: L.append(f'v_add_f32 {V(vTs)}, {V(vTs)}, {e}')
            if j & 1: L.append(f'v_cvt_pk_bf16_f32 {V(p0 + (j >> 1))}, {V(vE + ((j-1) & 7))}, {e}')
    return L

def max_block(qb, m, t):
    s0 = vS + 16 * qb
    L = [f'v_max3_f32 {V(m)}, {V(s0)}, {V(s0+1)}, {V(s0+2)}', f'v_max3_f32 {V(t)}, {V(s0+3)}, {V(s0+4)}, {V(s0+5)}']
    for k in range(6, 14, 4):
        L += [f'v_max3_f32 {V(m)}, {V(m)}, {V(s0+k)}, {V(s0+k+1)}', f'v_max3_f32 {V(t)}, {V(t)}, {V(s0+k+2)}, {V(s0+k+3)}']
    L += [f'v_max3_f32 {V(m)}, {V(m)}, {V(s0+14)}, {V(s0+15)}', f'v_max_f32 {V(m)}, {V(m)}, {V(t)}', f'v_mov_b32 {V(t)}, {V(m)}',
          's_nop 1', f'v_permlane32_swap_b32 {V(m)}, {V(t)}', 's_nop 0', f'v_max_f32 {V(m)}, {V(m)}, {V(t)}']
    return L

def sm_stream(qb, first, tag):
    s0 = vS + 16 * qb; n0 = vN + 16 * qb
    if first:
        m, t = vE, vE + 1
        L = max_block(qb, m, t)
        for i in range(16): L.append(f'v_sub_f32 {V(s0+i)}, {V(s0+i)}, {V(m)}')
        for i in range(16): L.append(f'v_sub_f32 {V(n0+i)}, 0, {V(m)}')
        L += exp_block(qb)
        L.append(f'v_mov_b32 {V(vL+qb)}, {V(vTs)}')
        return L
    L = exp_block(qb)
    L += [f'v_cmp_lt_f32 vcc, {S(sThr)}, {V(vTs)}', f's_cbranch_vccnz SLOW{qb}', f'BACK{qb}:',
          f'v_add_f32 {V(vL+qb)}, {V(vL+qb)}, {V(vTs)}']
    return L

def slow_path(qb):
    s0 = vS + 16 * qb; n0 = vN + 16 * qb
    m, t, sc = vE, vE + 1, vE + 2
    L = [f'SLOW{qb}:', 's_nop 7', 's_nop 7']
    L += max_block(qb, m, t)
    L += [f'v_max_f32 {V(m)}, 0, {V(m)}', f'v_exp_f32 {V(sc)}, -{V(m)}', f'v_sub_f32 {V(t)}, {V(n0)}, {V(m)}']
    for i in range(16): L.append(f'v_mov_b32 {V(n0+i)}, {V(t)}')
    for i in range(16): L.append(f'v_sub_f32 {V(s0+i)}, {V(s0+i)}, {V(m)}')
    L.append(f'v_mul_f32 {V(vL+qb)}, {V(vL+qb)}, {V(sc)}')
    for a in range(4):
        for i in range(0, 16, 4):
            o = Oacc(a, qb) + i
            for k in range(4): L.append(f'v_accvgpr_read_b32 {V(vE+4+k)}, {A(o+k)}')
            for k in range(4): L.append(f'v_mul_f32 {V(vE+4+k)}, {V(vE+4+k)}, {V(sc)}')
            for k in range(4): L.append(f'v_accvgpr_write_b32 {A(o+k)}, {V(vE+4+k)}')
    L += exp_block(qb)
    L += ['s_nop 3', f's_branch BACK{qb}']
    return L

def k_reads():
    L = []
    for s in range(8):
        if s == 0: L.append(f'ds_read_b128 {V(vKf,4)}, {V(vKb)}')
        else:
            L += [f'v_xor_b32 {V(vAd + (s&1))}, {32*s}, {V(vKb)}', f'ds_read_b128 {V(vKf+4*s,4)}, {V(vAd + (s&1))}']
    L.append(f'v_xor_b32 {V(vKb)}, 0x4000, {V(vKb)}')
    return L

def v_reads():
    L = []
    for a in range(4):
        if a: L.append(f'v_xor_b32 {V(vAd + (a&1))}, {64*a}, {V(vVb)}')
        for u in range(2):
            for wp in range(2):
                ad = V(vVb) if a == 0 else V(vAd + (a&1))
                L.append(f'ds_read_b64_tr_b16 {V(vVf + (a*2+u)*4 + 2*wp, 2)}, {ad} offset:{4096*u + 2048*wp}')
    L.append(f'v_xor_b32 {V(vVb)}, 0x4000, {V(vVb)}')
    return L

def pre_tile():
    L = [f'v_add_u32 {V(vAd+3)}, {S(sM0K)}, {V(vL16)}']
    L += ['s_waitcnt vmcnt(24)'] + flush(0) + k_reads()
    L += ['s_waitcnt vmcnt(16)'] + flush(1) + ['s_waitcnt vmcnt(8)'] + flush(2) + ['s_waitcnt vmcnt(0)'] + flush(3)
    return L

def tile(first):
    mf = []
    for qb in range(3):
        for s in range(8):
            d = V(vS + 16*qb, 16)
            c = d if s else ('0' if first else V(vN + 16*qb, 16))
            mf.append(f'{MF} {d}, {V(vKf+4*s,4)}, {Qreg(qb,s)}, {c}')
    for qb in range(3):
        for a in range(4):
            for u in range(2):
                d = A(Oacc(a, qb), 16)
                c = '0' if (first and u == 0) else d
                mf.append(f'{MF} {d}, {V(vVf+(a*2+u)*4,4)}, {V(vP+8*qb+4*u,4)}, {c}')
    gaps = [[] for _ in range(48)]
    pre = ['s_waitcnt lgkmcnt(0)']
    gaps[0] += soff_calc(sSo, 2) + ['s_waitcnt vmcnt(16)']
    spread(gaps, v_reads(), 1, 8)
    kg, vg_ = dma_groups(False), dma_groups(True)
    kpos = OPT['kpos']; vpos = OPT['vpos']
    for i in range(8): gaps[kpos[i]] += kg[i]
    gaps[vpos[0] - 1].append('s_waitcnt lgkmcnt(0)')
    for i in range(8): gaps[vpos[i]] += vg_[i]
    sm = OPT['sm']
    for qb in range(3): spread(gaps, sm_stream(qb, first, qb), sm[qb][0], sm[qb][1])
    kw = OPT['kw']
    nv = sum(1 for p in vpos if p < kw)
    gaps[kw].insert(0, f's_waitcnt vmcnt({16 + nv})')
    spread(gaps, k_reads(), kw, 46)
    gaps[47] += [f's_xor_b32 {S(sM0K)}, {S(sM0K)}, 0x4000', f's_add_u32 {S(sT)}, {S(sT)}, 1']
    return weave(mf, gaps, pre)

vI = 240
def ident_init():
    t, a, b = 16, 17, 18
    L = [f'v_lshrrev_b32 {V(t)}, 4, {V(vL16)}',
         f'v_bfe_u32 {V(a)}, {V(t)}, 1, 1', f'v_bfe_u32 {V(b)}, {V(t)}, 3, 2', f'v_lshl_add_u32 {V(a)}, {V(b)}, 1, {V(a)}',
         f'v_bfe_u32 {V(b)}, {V(t)}, 2, 1', f'v_bfe_u32 {V(b+1)}, {V(t)}, 5, 1', f'v_xor_b32 {V(b)}, {V(b)}, {V(b+1)}',
         f'v_lshl_add_u32 {V(a)}, {V(b)}, 4, {V(a)}',
         f'v_and_b32 {V(b)}, 1, {V(t)}', f'v_lshlrev_b32 {V(b)}, 4, {V(b)}', f'v_mov_b32 {V(b+1)}, 0x3f80', f'v_lshlrev_b32 {V(b)}, {V(b)}, {V(b+1)}']
    for i in range(8):
        L += [f'v_cmp_eq_u32 vcc, {i}, {V(a)}', 's_nop 1', f'v_cndmask_b32 {V(vI+i)}, 0, {V(b)}, vcc']
    return L

def combine():
    L = ['COMBINE:']
    L += read_q(LDS_Q2)
    for qb in range(3):
        L += [f'v_mov_b32 {V(17+2*qb)}, {V(vL+qb)}', f'v_mov_b32 {V(16+2*qb)}, {V(vN+16*qb)}', 's_nop 0',
              f'v_permlane32_swap_b32 {V(17+2*qb)}, {V(vL+qb)}', 's_nop 0',
              f'v_add_f32 {V(17+2*qb)}, {V(17+2*qb)}, {V(vL+qb)}']
    L += [f's_lshl_b32 {S(sTmp)}, {S(sWv)}, 3', f'v_add_u32 {V(vAd)}, {S(sTmp)}, {V(vStat)}']
    for qb in range(3):
        L.append(f'ds_write_b64 {V(vAd)}, {V(16+2*qb,2)} offset:{1024*qb}')
    BL = [24 + 16*k for k in range(7)] + [176, 192]
    def rd(k):
        r, qb = 1 + k // 3, k % 3
        return [f'v_accvgpr_read_b32 {V(BL[k]+i)}, {A(Oacc(r,qb)+i)}' for i in range(16)]
    for k in range(8): L += rd(k)
    for r in range(1, 4):
        L += [f's_xor_b32 {S(sTmp)}, {S(sWv)}, {r}']
        if r == 1: L += [f's_mul_i32 {S(sTmp)}, {S(sTmp)}, 6144', f's_add_u32 {S(sTmp)}, {S(sTmp)}, {LDS_XR}']
        else: L += [f's_lshl_b32 {S(sTmp)}, {S(sTmp)}, 15']
        L += [f'v_add_u32 {V(vAd+r)}, {S(sTmp)}, {V(vL16)}']
    L += ['s_waitcnt lgkmcnt(0)', 's_barrier']
    ST = [136, 192, 200]
    for qb in range(3):
        for hh in range(2): L.append(f'ds_read_b128 {V(ST[qb]+4*hh,4)}, {V(vStat)} offset:{1024*qb + 16*hh}')
    for qb in range(3):
        n = lambda r: V(ST[qb] + 2*r); l = lambda r: V(ST[qb] + 2*r + 1)
        L += [f's_waitcnt lgkmcnt({4 - 2*qb})']
        L += [f'v_min3_f32 {V(22)}, {n(0)}, {n(1)}, {n(2)}', f'v_min_f32 {V(22)}, {V(22)}, {n(3)}']
        for r in range(4): L.append(f'v_sub_f32 {n(r)}, {V(22)}, {n(r)}')
        L.append(f'v_sub_f32 {V(16+2*qb)}, {V(22)}, {V(16+2*qb)}')
        for r in range(4): L.append(f'v_exp_f32 {n(r)}, {n(r)}')
        L += [f'v_exp_f32 {V(16+2*qb)}, {V(16+2*qb)}', f'v_mul_f32 {V(23)}, {n(0)}, {l(0)}']
        for r in range(1, 4): L.append(f'v_fma_f32 {V(23)}, {n(r)}, {l(r)}, {V(23)}')
        L += [f'v_rcp_f32 {V(23)}, {V(23)}', 's_nop 0', f'v_mul_f32 {V(16+2*qb)}, {V(16+2*qb)}, {V(23)}']
    L += rd(8)
    roff = {1: 0, 2: 0, 3: 24576}
    for k in range(9):
        r, qb = 1 + k // 3, k % 3; b = BL[k]
        for i in range(8): L.append(f'v_pk_mul_f32 {V(b+2*i,2)}, {V(b+2*i,2)}, {V(16+2*qb,2)} op_sel_hi:[1,0]')
        for i in range(8): L.append(f'v_cvt_pk_bf16_f32 {V(b+i)}, {V(b+2*i)}, {V(b+2*i+1)}')
        for u in range(2): L.append(f'ds_write_b128 {V(vAd+r)}, {V(b+4*u,4)} offset:{roff[r] + (qb*2+u)*1024}')
    L += ['s_waitcnt lgkmcnt(12)']
    for qb in range(3):
        b = 24 + 16*qb
        for i in range(16): L.append(f'v_accvgpr_read_b32 {V(b+i)}, {A(Oacc(0,qb)+i)}')
        for i in range(8): L.append(f'v_pk_mul_f32 {V(b+2*i,2)}, {V(b+2*i,2)}, {V(16+2*qb,2)} op_sel_hi:[1,0]')
    L += [f's_mul_i32 {S(sTmp)}, {S(sWv)}, 6144', f's_add_u32 {S(sTmp)}, {S(sTmp)}, {LDS_XR}', f'v_add_u32 {V(vAd)}, {S(sTmp)}, {V(vL16)}',
          f's_lshl_b32 {S(sTmp)}, {S(sWv)}, 15', f'v_add_u32 {V(vAd+1)}, {S(sTmp)}, {V(vL16)}']
    L += ['s_waitcnt lgkmcnt(0)', 's_barrier']
    rds = []; mfs = []
    for r in range(1, 4):
        for u in range(2):
            for qb in range(3):
                d = 72 + len(rds) * 4
                rds.append(f'ds_read_b128 {V(d,4)}, {V(vAd if r == 1 else vAd+1)} offset:{roff[r] + (qb*2+u)*1024}')
                mfs.append(f'{MF} {V(24+16*qb,16)}, {V(vI+4*u,4)}, {V(d,4)}, {V(24+16*qb,16)}')
    L += rds[:12]
    for k in range(18):
        if k < 6: L += [rds[12+k], 's_waitcnt lgkmcnt(12)']
        else: L += [f's_waitcnt lgkmcnt({17-k})']
        L.append(mfs[k])
    L += soff_calc(sSo, 1)
    for i in range(8):
        if i % 4 == 0: L += [f's_add_u32 m0, {S(sM0K)}, {24576 + 4096*(i>>2)}', 's_nop 0']
        L.append(f'buffer_load_dwordx4 {V(vOffV)}, {S(sV,4)}, {S(sSo + (i>>2))} offen offset:{1024*(i&3)}{KVF} lds')
    for qb in range(3):
        for i in range(8): L.append(f'v_cvt_pk_bf16_f32 {V(vVf+8*qb+i)}, {V(24+16*qb+2*i)}, {V(24+16*qb+2*i+1)}')
        L.append(f's_add_u32 {S(sTmp)}, {S(sOb)}, {qb*262144}')
        for u in range(2):
            L.append(f'buffer_store_dwordx4 {V(vVf+8*qb+4*u,4)}, {V(vL16)}, {S(sO,4)}, {S(sTmp)} offen offset:{1024*u}{STF}')
    L += [f's_add_u32 {S(sOb)}, {S(sOb)}, {12*262144}', 's_nop 1']
    return L

def k1():
    L = k1_prologue()
    L += k1_qproj()
    L += stamp()
    L += pre_tile() + ident_init() + tile(True)
    L += ['LOOP:'] + tile(False)
    L += [f's_and_b32 {S(sTmp)}, {S(sT)}, 7', f's_cmp_lg_u32 {S(sTmp)}, 0', 's_cbranch_scc1 LOOP', 's_nop 7', 's_nop 7']
    if OPT['stamps']:
        L += [f's_cmp_eq_u32 {S(sT)}, 8', 's_cbranch_scc0 NOST1'] + stamp() + ['NOST1:'] + stamp()
    L += combine()
    L += [f's_cmp_eq_u32 {S(sT)}, 16', 's_cbranch_scc1 K1_FIN']
    L += stamp()
    L += tile(True)
    L += ['s_branch LOOP']
    for qb in range(3): L += slow_path(qb)
    L += ['K1_FIN:'] + stamp_dump(0, sWv, sTmp)
    L += ['K1_END:', 's_endpgm']
    return L

def k2():
    sWo, sOs, sOut = 4, 8, 12
    sWv, sBr, sMt, sNt, sTmp, sTmp2, sG, sM, sWs, sOsA, sOsB = 24, 25, 26, 27, 28, 29, 30, 31, 32, 33, 34
    vL16, vOffW, vRd, vAd = 0, 1, 2, 4
    vOf, vWf = 16, 144
    L = ['s_cmp_ge_u32 s2, 240', 's_cbranch_scc1 K2_END',
         's_load_dwordx2 s[40:41], s[0:1], 32', 's_load_dwordx2 s[42:43], s[0:1], 72',
         f's_load_dwordx2 {S(sOut,2)}, s[0:1], 80', f's_load_dwordx2 {S(sOs,2)}, s[0:1], 96',
         ] + stamp_init(65536) + [
         's_and_b32 s3, s2, 7', f's_lshr_b32 {S(sTmp)}, s2, 3', f's_lshr_b32 {S(sBr)}, s3, 2',
         f's_mul_i32 {S(sTmp2)}, {S(sTmp)}, 52', f's_lshr_b32 {S(sTmp2)}, {S(sTmp2)}, 8',
         f's_mul_i32 {S(sNt)}, {S(sTmp2)}, 5', f's_sub_u32 {S(sNt)}, {S(sTmp)}, {S(sNt)}',
         f's_bfe_u32 {S(sMt)}, s3, 0x10001', f's_mul_i32 {S(sMt)}, {S(sMt)}, 6', f's_add_u32 {S(sMt)}, {S(sMt)}, {S(sTmp2)}',
         's_and_b32 s3, s3, 1', 's_mul_i32 s3, s3, 5', f's_add_u32 {S(sNt)}, {S(sNt)}, s3',
         'v_lshrrev_b32 v10, 6, v0', 'v_and_b32 v11, 63, v0', 's_nop 0', f'v_readfirstlane_b32 {S(sWv)}, v10',
         'v_lshlrev_b32 v0, 4, v11',
         'v_bfe_u32 v12, v11, 4, 1', 'v_lshlrev_b32 v12, 2, v12', 'v_and_b32 v13, 7, v11', 'v_xor_b32 v12, v12, v13',
         'v_lshlrev_b32 v12, 4, v12', 'v_lshrrev_b32 v13, 3, v11', 'v_mul_u32_u24 v13, 0x500, v13', f'v_add_u32 {V(vOffW)}, v12, v13',
         'v_lshrrev_b32 v12, 5, v11', 'v_bfe_u32 v13, v11, 2, 2', 'v_lshlrev_b32 v14, 3, v12', 'v_add_u32 v14, v14, v13',
         'v_lshlrev_b32 v14, 7, v14', 'v_lshrrev_b32 v13, 1, v13', f's_and_b32 {S(sTmp)}, {S(sWv)}, 1', f'v_xor_b32 v13, {S(sTmp)}, v13',
         'v_lshlrev_b32 v13, 6, v13', 'v_add_u32 v14, v14, v13',
         'v_and_b32 v13, 16, v11', 'v_lshlrev_b32 v13, 1, v13', 'v_add_u32 v14, v14, v13',
         'v_and_b32 v13, 1, v11', 'v_lshlrev_b32 v13, 4, v13', 'v_add_u32 v14, v14, v13',
         'v_and_b32 v13, 2, v11', 'v_lshlrev_b32 v13, 2, v13', 'v_add_u32 v14, v14, v13',
         f's_lshl_b32 {S(sM)}, {S(sWv)}, 15', f'v_add_u32 {V(vRd)}, {S(sM)}, v14', f'v_xor_b32 {V(vRd+1)}, 64, {V(vRd)}',
         'v_and_b32 v13, 31, v11', 'v_mul_u32_u24 v13, 0xa00, v13', 'v_lshlrev_b32 v12, 4, v12', 'v_add_u32 v5, v12, v13',
         's_waitcnt lgkmcnt(0)',
         f's_cmp_eq_u32 {S(sBr)}, 0', f's_cselect_b64 {S(sWo,2)}, s[40:41], s[42:43]',
         f's_and_b32 {S(sWo+1)}, {S(sWo+1)}, 0xffff', f's_mov_b32 {S(sWo+2)}, 5242880', f's_mov_b32 {S(sWo+3)}, 0x20000',
         f's_mul_i32 s3, {S(sBr)}, 6291456', f's_add_u32 {S(sOs)}, {S(sOs)}, s3', f's_addc_u32 {S(sOs+1)}, {S(sOs+1)}, 0',
         f's_and_b32 {S(sOs+1)}, {S(sOs+1)}, 0xffff', f's_mov_b32 {S(sOs+2)}, 6291456', f's_mov_b32 {S(sOs+3)}, 0x20000',
         f's_and_b32 {S(sOut+1)}, {S(sOut+1)}, 0xffff', f's_mov_b32 {S(sOut+2)}, 1966080', f's_mov_b32 {S(sOut+3)}, 0x20000',
         f's_mul_i32 {S(sWs)}, {S(sWv)}, 1310720', f's_lshl_b32 s3, {S(sNt)}, 7', f's_add_u32 {S(sWs)}, {S(sWs)}, s3',
         f's_lshr_b32 {S(sTmp)}, {S(sWv)}, 1', f's_lshl_b32 s3, {S(sMt)}, 1', f's_add_u32 s3, s3, {S(sTmp)}',
         f's_lshl_b32 {S(sOsA)}, s3, 18', f's_lshl_b32 {S(sTmp2)}, {S(sWv)}, 16', f's_add_u32 {S(sOsA)}, {S(sOsA)}, {S(sTmp2)}',
         f's_xor_b32 {S(sOsB)}, {S(sOsA)}, 0x40000',
         ]
    def issue(b):
        G = []
        for i in range(8):
            G.append([f's_add_u32 m0, {S(sM)}, {8192*b + 1024*i}', f's_add_u32 {S(sTmp)}, {S(sWs)}, {i*10240}',
                      f'buffer_load_dwordx4 {V(vOffW)}, {S(sWo,4)}, {S(sTmp)} offen{K2F} lds'])
        for ks in range(4):
            for aq in range(2):
                G.append([f'buffer_load_dwordx4 {V(vOf + 32*b + (ks*2+aq)*4, 4)}, {V(vL16)}, {S(sOs,4)}, {S(sOsA+aq)} offen offset:{1024*ks}{K2F}'])
        G[-1] += [f's_add_u32 {S(sWs)}, {S(sWs)}, 81920', f's_add_u32 {S(sOsA)}, {S(sOsA)}, 4096', f's_add_u32 {S(sOsB)}, {S(sOsB)}, 4096']
        return G
    for b in range(3):
        for g in issue(b): L += g
    for i in range(64): L.append(f'v_accvgpr_write_b32 {A(i)}, 0')
    def body(b, nxt, wait):
        l = [f's_waitcnt vmcnt({wait})']
        for ks in range(4):
            for an in range(2):
                for wp in range(2):
                    l.append(f'ds_read_b64_tr_b16 {V(vWf + (ks*2+an)*4 + 2*wp, 2)}, {V(vRd+an)} offset:{8192*b + 2048*ks + 512*wp}')
        mf = []
        for ks in range(4):
            for an in range(2):
                for aq in range(2):
                    d = A((an*2+aq)*16, 16)
                    mf.append(f'{MF} {d}, {V(vWf+(ks*2+an)*4,4)}, {V(vOf+32*b+(ks*2+aq)*4,4)}, {d}')
        gaps = [[] for _ in range(16)]
        for k in range(1, 8): gaps[2*k-1].append(f's_waitcnt lgkmcnt({14-2*k})')
        if nxt: spread_groups(gaps, issue((b + 3) % 4), 0, 15)
        return l + weave(mf, gaps, ['s_waitcnt lgkmcnt(14)'])
    L += [f's_mov_b32 {S(sG)}, 0', 'K2_LOOP:']
    for b in range(4): L += body(b, True, 32)
    L += [f's_add_u32 {S(sG)}, {S(sG)}, 1', f's_cmp_lt_u32 {S(sG)}, 3', 's_cbranch_scc1 K2_LOOP']
    L += body(0, True, 32) + body(1, False, 32) + body(2, False, 16) + body(3, False, 0)
    L += stamp() + ['s_nop 7', 's_nop 7', 's_barrier']
    for a in range(1, 4):
        an, aq = a >> 1, a & 1
        L += [f's_xor_b32 {S(sTmp)}, {S(sWv)}, {an | (aq << 1)}', f's_mul_i32 {S(sTmp)}, {S(sTmp)}, 12288', f'v_add_u32 {V(vAd)}, {S(sTmp)}, {V(vL16)}']
        for i in range(4): L.append(f'ds_write_b128 {V(vAd)}, {A(a*16+4*i,4)} offset:{(a-1)*4096 + 1024*i}')
    L += [f's_mul_i32 {S(sTmp)}, {S(sWv)}, 12288', f'v_add_u32 {V(vAd)}, {S(sTmp)}, {V(vL16)}']
    for i in range(16): L.append(f'v_accvgpr_read_b32 {V(16+i)}, {A(i)}')
    L += ['s_waitcnt lgkmcnt(0)', 's_barrier']
    for k in range(12): L.append(f'ds_read_b128 {V(32+4*k,4)}, {V(vAd)} offset:{1024*k}')
    L += [f's_lshr_b32 {S(sTmp)}, {S(sWv)}, 1', f's_lshl_b32 s3, {S(sMt)}, 1', f's_add_u32 s3, s3, {S(sTmp)}', 's_mul_i32 s3, s3, 81920',
          f's_mul_i32 {S(sTmp)}, {S(sBr)}, 1280', f's_add_u32 s3, s3, {S(sTmp)}', f's_lshl_b32 {S(sTmp)}, {S(sNt)}, 7', f's_add_u32 s3, s3, {S(sTmp)}',
          f's_and_b32 {S(sTmp)}, {S(sWv)}, 1', f's_lshl_b32 {S(sTmp)}, {S(sTmp)}, 6', f's_add_u32 s3, s3, {S(sTmp)}']
    L += ['s_waitcnt lgkmcnt(0)']
    for a in range(3):
        for i in range(16): L.append(f'v_add_f32 {V(16+i)}, {V(16+i)}, {V(32+16*a+i)}')
    for i in range(8): L.append(f'v_cvt_pk_bf16_f32 {V(80+i)}, {V(16+2*i)}, {V(17+2*i)}')
    for u in range(2): L.append(f'buffer_store_dwordx4 {V(80+4*u,4)}, v5, {S(sOut,4)}, s3 offen offset:{32*u}')
    L += stamp_dump(65536, sWv, sTmp)
    L += ['K2_END:', 's_endpgm']
    return L

def emit(kname, L, nv, acc):
    out = [f'.globl {kname}', '.p2align 8', f'.type {kname},@function', f'{kname}:']
    for t in L: out.append(t if is_label(t) else '    ' + t)
    desc = ['.p2align 6', f'.amdhsa_kernel {kname}', f'  .amdhsa_next_free_vgpr {nv}', '  .amdhsa_next_free_sgpr 102',
            f'  .amdhsa_accum_offset {acc}', '  .amdhsa_group_segment_fixed_size 0', '  .amdhsa_kernarg_size 104',
            '  .amdhsa_user_sgpr_count 2', '  .amdhsa_user_sgpr_kernarg_segment_ptr 1', '  .amdhsa_system_sgpr_workgroup_id_x 1',
            '.end_amdhsa_kernel']
    return out, desc

def main():
    a = k1(); b = k2()
    bad = check_seq(code_only(a), 'k1') + check_seq(code_only(b), 'k2')
    k1n, k2n = NAME + '_kernel', 'oproj_kernel'
    hdr = [f'; @launch kernel={k1n} grid=(256,1,1) block=(256,1,1) lds=163840',
           f'; @launch kernel={k2n} grid=(240,1,1) block=(256,1,1) lds=131072',
           '.amdgcn_target "amdgcn-amd-amdhsa--gfx950"', '.text']
    c1, d1 = emit(k1n, a, 512, 256); c2, d2 = emit(k2n, b, 256, 192)
    txt = '\n'.join(hdr + c1 + c2 + ['.section .rodata,"a"'] + d1 + d2) + '\n'
    open(sys.argv[1], 'w').write(txt)
    print('hazards', bad, 'lines', len(a), len(b))
main()
```

```python
import sys, struct, math
sys.path.insert(0, 'gen')
from asmlib import *

NAME = 'concat_heads__gqa_block_cached__mha_block_cached__near_ridge'
def f32(x): return '0x%08x' % struct.unpack('<I', struct.pack('<f', x))[0]
CSCALE = f32(128 ** -0.5 * math.log2(math.e))

OPT = dict(warm=0, pre=0, oflag='', k2diag=0, k2rot=8, kvflag='nt', early=8, per=4, stamps=0, rot=0, half=0, qrot=1, nA=2, wxflag='', k2flag='', stflag='sc1')
OPT.update(kpos=[1,4,7,10,13,16,19,22], vpos=[24,27,30,33,36,39,42,45], sm=[(10,19),(20,29),(30,39)], kw=40)
for a in sys.argv[2:]:
    k, v = a.split('=')
    OPT[k] = eval(v) if v[0] in '[(' else (v if not v.lstrip('-').isdigit() else int(v))
fl = lambda k: (' ' + OPT[k].replace('+', ' ')) if OPT[k] else ''
KVF, WXF, K2F, STF = fl('kvflag'), fl('wxflag'), fl('k2flag'), fl('stflag')

def R(f, a, n=1):
    return f'{f}{a}' if n == 1 else f'{f}[{a}:{a+n-1}]'
V = lambda a, n=1: R('v', a, n)
A = lambda a, n=1: R('a', a, n)
S = lambda a, n=1: R('s', a, n)
MF = 'v_mfma_f32_32x32x16_bf16'

sK, sV, sW, sX, sO = 4, 8, 12, 16, 20
sWv, sBr, sH, sBp, sT, sSo, sSo2, sM0K, sW8, sTmp, sTmp2 = 24, 25, 26, 27, 28, 29, 30, 31, 32, 33, 34
sWb, sXb, sWm, sXm, sThr, sOb, sQw, sRot = 35, 36, 37, 38, 39, 56, 57, 58
sCh, sCw, sCx = 44, 45, 46
sDbg = 60
sSt = 64
vL16, vKb, vVb, vOffK, vOffV = 0, 1, 2, 3, 7
vL, vTs, vAd, vE, vP, vS, vN, vKf, vVf, vQ2 = 8, 11, 12, 16, 24, 48, 96, 144, 176, 208
vOffW, vOffX, vWA, vXA = 240, 241, 243, 247
vStat = 255
def Qreg(qb, s):
    return A(192 + qb * 32 + 4 * s, 4) if qb < 2 else V(vQ2 + 4 * s, 4)
def Oacc(a, qb): return (a * 3 + qb) * 16
LDS_Q1, LDS_Q2, LDS_STAT, LDS_XR = 81920, 131072, 155648, 131072
SB = [0, 40960, 81920, 122880]
LDS_DUMMY = 158720
LDS_CNT = 163328
FLAG_OFF = 12582912
sF = 92
sRt, sNW, sNO, sWs0, sOs0, sWs, sOsA, sOsB, sOut, sFlg, sPoll, sG, sTag, sGen, sM = 35, 36, 37, 38, 40, 41, 42, 43, 44, 45, 46, 47, 52, 53, 57
vOffW2 = 248
SPIN = 30000

stamp_n = [0]
def stamp():
    if not OPT['stamps']: return []
    i = stamp_n[0]; stamp_n[0] += 1
    return [f's_memrealtime {S(sSt + 2 * i, 2)}']

def st2(w=0):
    if OPT['stamps'] != 2: return []
    return stamp() + (['s_waitcnt lgkmcnt(0)'] if w else [])
def stamp_init(koff):
    if not OPT['stamps']: return []
    stamp_n[0] = 0
    return [f's_load_dwordx2 {S(sDbg,2)}, s[0:1], 96', 's_memtime s[96:97]'] + stamp()
def stamp_dump(koff, swv, stmp):
    if not OPT['stamps']: return []
    L = ['s_waitcnt vmcnt(0)'] + stamp() + ['s_memtime s[98:99]', 's_waitcnt lgkmcnt(0)']
    L += [f's_add_u32 {S(sDbg)}, {S(sDbg)}, {(16<<20) + koff}', f's_addc_u32 {S(sDbg+1)}, {S(sDbg+1)}, 0',
          f's_and_b32 {S(sDbg+1)}, {S(sDbg+1)}, 0xffff', f's_mov_b32 {S(sDbg+2)}, 65536', f's_mov_b32 {S(sDbg+3)}, 0x20000',
          f's_lshl_b32 {S(stmp)}, s2, 2', f's_add_u32 {S(stmp)}, {S(stmp)}, {S(swv)}', f's_lshl_b32 {S(stmp)}, {S(stmp)}, 6', 'v_mov_b32 v1, 0']
    for i in range(stamp_n[0]):
        L += [f'v_mov_b32 v2, {S(sSt+2*i)}', f'buffer_store_dword v2, v1, {S(sDbg,4)}, {S(stmp)} offen offset:{4*i}']
    L += ['s_sub_u32 s98, s98, s96', 'v_mov_b32 v2, s98', f'buffer_store_dword v2, v1, {S(sDbg,4)}, {S(stmp)} offen offset:60']
    L += ['s_getreg_b32 s98, hwreg(HW_REG_XCC_ID)', 'v_mov_b32 v2, s98', f'buffer_store_dword v2, v1, {S(sDbg,4)}, {S(stmp)} offen offset:56']
    return L

def k1_prologue():
    L = [
        f's_cmp_ge_u32 s2, {128 if OPT["half"] else 256}', 's_cbranch_scc1 K1_END',
        's_load_dwordx8 s[40:47], s[0:1], 0', 's_load_dwordx8 s[48:55], s[0:1], 40',
        f's_load_dwordx2 {S(sO,2)}, s[0:1], 96',
    ]
    L += stamp_init(0)
    L += [
        's_and_b32 s3, s2, 7', f's_lshr_b32 {S(sTmp)}, s2, 3', f's_lshr_b32 {S(sBr)}, s3, 2',
        's_and_b32 s3, s3, 3', 's_lshl_b32 s3, s3, 3', f's_and_b32 {S(sH)}, {S(sTmp)}, 7',
        f's_add_u32 {S(sH)}, {S(sH)}, s3', f's_lshr_b32 {S(sBp)}, {S(sTmp)}, 3',
        'v_lshrrev_b32 v20, 6, v0', 'v_and_b32 v21, 63, v0', 's_nop 0',
        f'v_readfirstlane_b32 {S(sWv)}, v20',
        'v_lshlrev_b32 v0, 4, v21',
        'v_lshrrev_b32 v22, 4, v21',
        'v_and_b32 v23, 15, v21',
        'v_xor_b32 v24, v23, v22', 'v_lshlrev_b32 v24, 4, v24', 'v_lshlrev_b32 v25, 8, v22',
        f'v_add_u32 {V(vOffK)}, v24, v25',
        f'v_xor_b32 {V(vOffK+1)}, 64, {V(vOffK)}', f'v_xor_b32 {V(vOffK+2)}, 0x80, {V(vOffK)}',
        f'v_xor_b32 {V(vOffK+3)}, 0xc0, {V(vOffK)}',
        'v_lshlrev_b32 v24, 2, v22', 'v_xor_b32 v24, v23, v24', 'v_lshlrev_b32 v24, 4, v24',
        f'v_add_u32 {V(vOffV)}, v24, v25', 'v_lshlrev_b32 v25, 13, v22', f'v_add_u32 {V(vOffW)}, v24, v25',
        'v_and_b32 v24, 7, v21', 'v_xor_b32 v24, v24, v22', 'v_lshlrev_b32 v24, 4, v24',
        'v_lshrrev_b32 v25, 3, v21', 'v_mul_u32_u24 v25, 0x500, v25', f'v_add_u32 {V(vOffX)}, v24, v25',
        f'v_xor_b32 {V(vOffX+1)}, 64, {V(vOffX)}',
        f's_lshl_b32 {S(sW8)}, {S(sWv)}, 13', f's_lshl_b32 {S(sM0K)}, {S(sWv)}, 15',
        f's_lshl_b32 {S(sWb)}, {S(sWv)}, 17', f's_lshl_b32 {S(sWm)}, {S(sWv)}, 12',
        f's_mul_i32 {S(sXm)}, {S(sWv)}, 6144', f's_add_u32 {S(sXm)}, {S(sXm)}, 16384',
        f's_lshr_b32 {S(sTmp)}, {S(sWv)}, 1', f's_mul_i32 {S(sXb)}, {S(sTmp)}, 491520',
        f's_and_b32 {S(sTmp2)}, {S(sWv)}, 1', f's_mul_i32 s3, {S(sTmp2)}, 61440', f's_add_u32 {S(sXb)}, {S(sXb)}, s3',
        f's_mov_b32 {S(sThr)}, {f32(256.0)}',
        f's_mul_i32 {S(sQw)}, {S(sTmp)}, {LDS_Q2 - LDS_Q1}', f's_lshl_b32 s3, {S(sTmp2)}, 12',
        f's_add_u32 {S(sQw)}, {S(sQw)}, s3', f's_add_u32 {S(sQw)}, {S(sQw)}, {LDS_Q1}',
        'v_lshrrev_b32 v26, 5, v21', 'v_and_b32 v27, 31, v21', 'v_bfe_u32 v28, v21, 2, 2',
        'v_and_b32 v29, 16, v21', 'v_lshlrev_b32 v29, 1, v29',
        'v_and_b32 v30, 1, v21', 'v_lshlrev_b32 v30, 4, v30', 'v_add_u32 v29, v29, v30',
        'v_and_b32 v30, 2, v21', 'v_lshlrev_b32 v30, 2, v30', 'v_add_u32 v29, v29, v30',
        'v_xor_b32 v30, v26, v23', 'v_lshlrev_b32 v30, 4, v30', 'v_lshlrev_b32 v31, 8, v27',
        'v_add_u32 v30, v30, v31', f'v_add_u32 {V(vKb)}, {S(sM0K)}, v30',
        'v_lshlrev_b32 v30, 2, v26', 'v_add_u32 v30, v30, v28', 'v_lshlrev_b32 v30, 8, v30',
        f'v_xor_b32 v31, {S(sWv)}, v28', 'v_lshlrev_b32 v31, 6, v31', 'v_add3_u32 v30, v30, v31, v29',
        f'v_add_u32 v30, {S(sM0K)}, v30', f'v_add_u32 {V(vVb)}, 0x2000, v30',
        'v_lshlrev_b32 v30, 3, v26', 'v_add_u32 v30, v30, v28', 'v_lshlrev_b32 v30, 8, v30',
        f's_lshl_b32 s3, {S(sTmp2)}, 1', 'v_xor_b32 v31, s3, v28', 'v_lshlrev_b32 v31, 6, v31',
        f'v_add3_u32 {V(vWA)}, v30, v31, v29', f'v_xor_b32 {V(vWA+1)}, 64, {V(vWA)}',
        f'v_add_u32 {V(vWA+2)}, {SB[2]}, {V(vWA)}', f'v_add_u32 {V(vWA+3)}, {SB[2]}, {V(vWA+1)}',
        f's_mul_i32 s3, {S(sTmp)}, 12288', 's_add_u32 s3, s3, 16384',
        'v_bfe_u32 v30, v21, 1, 3', 'v_xor_b32 v30, v30, v26', 'v_lshlrev_b32 v30, 4, v30',
        'v_lshlrev_b32 v31, 7, v27', f'v_add3_u32 {V(vXA)}, v30, v31, s3',
    ]
    for ks in range(1, 4):
        L += [f'v_xor_b32 {V(vXA+ks)}, {32*ks}, {V(vXA)}']
    for ks in range(4):
        L += [f'v_add_u32 {V(vXA+4+ks)}, {SB[2]}, {V(vXA+ks)}']
    L += [f'v_lshlrev_b32 {V(vStat)}, 5, v27', f'v_add_u32 {V(vStat)}, {LDS_STAT}, {V(vStat)}']
    L += [
        's_waitcnt lgkmcnt(0)',
        f's_cmp_eq_u32 {S(sBr)}, 0',
        's_cselect_b64 s[40:41], s[40:41], s[48:49]', 's_cselect_b64 s[42:43], s[42:43], s[50:51]',
        's_cselect_b64 s[44:45], s[44:45], s[52:53]', 's_cselect_b64 s[46:47], s[46:47], s[54:55]',
        f's_lshl_b32 s3, {S(sBp)}, 5', f's_add_u32 s3, s3, {S(sH)}', 's_lshl_b32 s3, s3, 18',
        f's_add_u32 {S(sK)}, s42, s3', f's_addc_u32 {S(sK+1)}, s43, 0', f's_and_b32 {S(sK+1)}, {S(sK+1)}, 0xffff',
        f's_sub_u32 {S(sK+2)}, 0x4000000, s3', f's_mov_b32 {S(sK+3)}, 0x20000',
        f's_add_u32 {S(sV)}, s44, s3', f's_addc_u32 {S(sV+1)}, s45, 0', f's_and_b32 {S(sV+1)}, {S(sV+1)}, 0xffff',
        f's_sub_u32 {S(sV+2)}, 0x4000000, s3', f's_mov_b32 {S(sV+3)}, 0x20000',
        f's_lshl_b32 s3, {S(sH)}, 8',
        f's_add_u32 {S(sW)}, s46, s3', f's_addc_u32 {S(sW+1)}, s47, 0', f's_and_b32 {S(sW+1)}, {S(sW+1)}, 0xffff',
        f's_sub_u32 {S(sW+2)}, 5242880, s3', f's_mov_b32 {S(sW+3)}, 0x20000',
        f's_mul_i32 s3, {S(sBp)}, 122880',
        f's_add_u32 {S(sX)}, s40, s3', f's_addc_u32 {S(sX+1)}, s41, 0', f's_and_b32 {S(sX+1)}, {S(sX+1)}, 0xffff',
        f's_sub_u32 {S(sX+2)}, 983040, s3', f's_mov_b32 {S(sX+3)}, 0x20000',
        f's_mul_i32 s3, {S(sBr)}, 40', 's_add_u32 s3, s3, 32', 's_load_dwordx2 s[48:49], s[0:1], s3', 's_load_dwordx2 s[50:51], s[0:1], 80',
        f's_add_u32 {S(sF)}, {S(sO)}, {FLAG_OFF}', f's_addc_u32 {S(sF+1)}, {S(sO+1)}, 0', f's_load_dword {S(sGen)}, {S(sF,2)}, 4096',
        f's_and_b32 {S(sF+1)}, {S(sF+1)}, 0xffff', f's_mov_b32 {S(sF+2)}, 8192', f's_mov_b32 {S(sF+3)}, 0x20000',
        f's_mul_i32 s3, {S(sBr)}, 6291456',
        f's_add_u32 {S(sO)}, {S(sO)}, s3', f's_addc_u32 {S(sO+1)}, {S(sO+1)}, 0', f's_and_b32 {S(sO+1)}, {S(sO+1)}, 0xffff',
        f's_mov_b32 {S(sO+2)}, 6291456', f's_mov_b32 {S(sO+3)}, 0x20000',
        f's_mul_i32 {S(sOb)}, {S(sBp)}, 768', f's_lshl_b32 s3, {S(sH)}, 3', f's_add_u32 {S(sOb)}, {S(sOb)}, s3',
        f's_lshl_b32 s3, {S(sWv)}, 1', f's_add_u32 {S(sOb)}, {S(sOb)}, s3', f's_lshl_b32 {S(sOb)}, {S(sOb)}, 10',
        f's_mov_b32 {S(sT)}, 0',
    ]
    if OPT['rot']:
        L += [f's_lshr_b32 {S(sRot)}, s2, 3', f's_and_b32 {S(sRot)}, {S(sRot)}, 7']
    else:
        L += [f's_mov_b32 {S(sRot)}, 0']
    return L

def stage_dma(j):
    sb = SB[j % 4]; G = []
    for i in range(4):
        G.append([f's_add_u32 m0, {S(sWm)}, {sb + 1024*i}', f's_add_u32 {S(sTmp)}, {S(sCw)}, {i*32768}',
                  f'buffer_load_dwordx4 {V(vOffW)}, {S(sW,4)}, {S(sTmp)} offen{WXF} lds'])
    for i in range(6):
        G.append([f's_add_u32 m0, {S(sXm)}, {sb + 1024*i}', f's_add_u32 {S(sTmp)}, {S(sCx)}, {i*10240}',
                  f'buffer_load_dwordx4 {V(vOffX + (i&1))}, {S(sX,4)}, {S(sTmp)} offen{WXF} lds'])
    G[-1] += [f's_add_u32 {S(sCh)}, {S(sCh)}, 1', f's_cmp_eq_u32 {S(sCh)}, 10', f's_cselect_b32 {S(sCh)}, 0, {S(sCh)}',
              f's_lshl_b32 {S(sCw)}, {S(sCh)}, 19', f's_add_u32 {S(sCw)}, {S(sCw)}, {S(sWb)}',
              f's_lshl_b32 {S(sCx)}, {S(sCh)}, 7', f's_add_u32 {S(sCx)}, {S(sCx)}, {S(sXb)}']
    return G

def soff_calc(dst, tadd):
    return [f's_add_u32 {S(sTmp)}, {S(sT)}, {tadd}', f's_lshr_b32 {S(sTmp2)}, {S(sTmp)}, 3', f's_lshl_b32 {S(sTmp2)}, {S(sTmp2)}, 25',
            f's_add_u32 {S(sTmp)}, {S(sTmp)}, {S(sRot)}',
            f's_and_b32 {S(sTmp)}, {S(sTmp)}, 7', f's_lshl_b32 {S(sTmp)}, {S(sTmp)}, 15', f's_add_u32 {S(dst)}, {S(sTmp)}, {S(sTmp2)}',
            f's_add_u32 {S(dst)}, {S(dst)}, {S(sW8)}', f's_add_u32 {S(dst+1)}, {S(dst)}, 4096']

def kv_pre(n):
    p, i = n >> 3, n & 7
    so = 40 + 2 * (p >> 1) + (i >> 2)
    voff = vOffK + (i & 3) if p % 2 == 0 else vOffV
    srd = sK if p % 2 == 0 else sV
    return [f'buffer_load_dwordx4 {A(32*p + 4*i, 4)}, {V(voff)}, {S(srd,4)}, {S(so)} offen offset:{1024*(i&3)}{KVF}']

def spread_groups(gaps, groups, g0, g1):
    n = g1 - g0 + 1
    for k, g in enumerate(groups):
        gaps[g0 + (k * n) // len(groups)].extend(g)

lab_n = [0]
def lab(p='L'):
    lab_n[0] += 1
    return f'{p}{lab_n[0]}'

def k1_qproj():
    L = []
    L += soff_calc(40, 0) + soff_calc(42, 1)
    if OPT['qrot']:
        L += [f's_mul_i32 {S(sCh)}, {S(sBp)}, 5', f's_add_u32 {S(sCh)}, {S(sCh)}, 1', f's_lshr_b32 {S(sCh)}, {S(sCh)}, 1',
              f's_and_b32 {S(sTmp)}, {S(sH)}, 7', f's_add_u32 {S(sCh)}, {S(sCh)}, {S(sTmp)}',
              f's_sub_u32 {S(sTmp)}, {S(sCh)}, 10', f's_cmp_ge_u32 {S(sCh)}, 10', f's_cselect_b32 {S(sCh)}, {S(sTmp)}, {S(sCh)}']
    else:
        L += [f's_mov_b32 {S(sCh)}, 0']
    L += [f's_lshl_b32 {S(sCw)}, {S(sCh)}, 19', f's_add_u32 {S(sCw)}, {S(sCw)}, {S(sWb)}',
          f's_lshl_b32 {S(sCx)}, {S(sCh)}, 7', f's_add_u32 {S(sCx)}, {S(sCx)}, {S(sXb)}']
    L += [f's_cmp_lt_u32 {S(sBp)}, {OPT["nA"]}', 's_cselect_b64 vcc, -1, 0']
    for j in range(3):
        for g in stage_dma(j): L += g
    sk = lab()
    L += [f's_cbranch_vccz {sk}']
    for n in range(32): L += kv_pre(n)
    L += [f'{sk}:']
    Wf = lambda ks, d: 144 + ks * 8 + d * 4
    Xf = lambda ks, qb: 176 + ks * 12 + qb * 4
    late = {7: range(0, 11), 8: range(11, 22), 9: range(22, 32)}
    for j in range(10):
        base = 10 * min(2, 9 - j)
        extraA = 32 if j < 3 else 0
        extraB = {8: 11, 9: 22}.get(j, 0)
        if extraA != extraB:
            l1, l2 = lab(), lab()
            L += [f's_cbranch_vccz {l1}', f's_waitcnt vmcnt({base + extraA})', f's_branch {l2}', f'{l1}:', f's_waitcnt vmcnt({base + extraB})', f'{l2}:']
        else:
            L += [f's_waitcnt vmcnt({base})']
        if j == 0: L += ['s_waitcnt lgkmcnt(0)']
        L += ['s_barrier']
        if j in (0, 3, 9) and OPT['stamps'] == 1: L += stamp() + ['s_waitcnt lgkmcnt(0)']
        b = j % 4; hi = b >> 1; off = (b & 1) * 40960
        def reads(ks):
            r = []
            for d in range(2):
                for wp in range(2):
                    r.append(f'ds_read_b64_tr_b16 {V(Wf(ks,d) + 2*wp, 2)}, {V(vWA + 2*hi + d)} offset:{off + 4096*ks + 1024*wp}')
            for qb in range(3):
                r.append(f'ds_read_b128 {V(Xf(ks,qb), 4)}, {V(vXA + 4*hi + ks)} offset:{off + 4096*qb}')
            return r
        L += reads(0) + reads(1)
        groups = []
        if j + 3 < 10:
            groups = stage_dma(j + 3)
        else:
            for n in late[j]:
                sk = lab()
                groups.append([f's_cbranch_vccnz {sk}'] + kv_pre(n) + [f'{sk}:'])
        mf = []; gaps = [[] for _ in range(24)]
        for ks in range(4):
            for d in range(2):
                for qb in range(3):
                    acc = V(48 + (d * 3 + qb) * 16, 16)
                    c = '0' if (j == 0 and ks == 0) else acc
                    mf.append(f'{MF} {acc}, {V(Wf(ks,d),4)}, {V(Xf(ks,qb),4)}, {c}')
        spread(gaps, reads(2), 0, 4); spread(gaps, reads(3), 6, 10)
        gaps[5].append('s_waitcnt lgkmcnt(7)'); gaps[11].append('s_waitcnt lgkmcnt(7)'); gaps[17].append('s_waitcnt lgkmcnt(0)')
        spread_groups(gaps, groups, 0, 22)
        L += weave(mf, gaps, ['s_waitcnt lgkmcnt(7)'])
    L += ['s_nop 7', 's_nop 3', f'v_add_u32 {V(vAd)}, {S(sQw)}, {V(vL16)}']
    for d in range(2):
        for qb in range(3):
            a0 = 48 + (d * 3 + qb) * 16
            for i in range(16): L.append(f'v_mul_f32 {V(a0+i)}, {CSCALE}, {V(a0+i)}')
            t0 = 144 + (d * 3 + qb) * 8
            for i in range(8): L.append(f'v_cvt_pk_bf16_f32 {V(t0+i)}, {V(a0+2*i)}, {V(a0+2*i+1)}')
            for u in range(2):
                L.append(f'ds_write_b128 {V(vAd)}, {V(t0+4*u,4)} offset:{(qb*8 + 2*d + u)*1024}')
    L += ['s_waitcnt lgkmcnt(0)', 's_barrier']
    L += read_q(LDS_Q1)
    L += ['s_waitcnt lgkmcnt(0)', 's_barrier']
    return L

def read_q(base):
    L = [f'v_add_u32 {V(vAd)}, {base}, {V(vL16)}']
    for qb in range(3):
        for s in range(8):
            L.append(f'ds_read_b128 {Qreg(qb,s)}, {V(vAd)} offset:{(qb*8+s)*1024}')
    return L

def flush(p):
    return [f'ds_write_b128 {V(vAd+3)}, {A(32*p + 4*i, 4)} offset:{8192*p + 1024*i}' for i in range(8)]

def dma_groups(isV):
    G = []
    srd = sV if isV else sK
    for i in range(8):
        g = []
        if i % 4 == 0 and not isV:
            g += [f's_add_u32 m0, {S(sM0K)}, {4096*(i>>2)}', 's_nop 0']
        if i % 4 == 0 and isV:
            g += [f's_add_u32 {S(sTmp)}, {S(sM0K)}, {8192 + 4096*(i>>2)}', f's_and_b32 {S(sTmp2)}, {S(sT)}, 7', f's_cmp_eq_u32 {S(sTmp2)}, 7',
                  f's_cselect_b32 m0, {LDS_DUMMY}, {S(sTmp)}', f's_cselect_b32 {S(sSo + (i>>2))}, 0x7fff0000, {S(sSo + (i>>2))}']
        voff = vOffV if isV else vOffK + (i & 3)
        g.append(f'buffer_load_dwordx4 {V(voff)}, {S(srd,4)}, {S(sSo + (i>>2))} offen offset:{1024*(i&3)}{KVF} lds')
        G.append(g)
    return G

def exp_block(qb):
    s0 = vS + 16 * qb; p0 = vP + 8 * qb
    L = []
    for i in range(16 + 2):
        if i < 16: L.append(f'v_exp_f32 {V(vE + (i & 7))}, {V(s0 + i)}')
        j = i - 2
        if j >= 0:
            e = V(vE + (j & 7))
            if j == 1: L.append(f'v_add_f32 {V(vTs)}, {V(vE)}, {e}')
            elif j > 1: L.append(f'v_add_f32 {V(vTs)}, {V(vTs)}, {e}')
            if j & 1: L.append(f'v_cvt_pk_bf16_f32 {V(p0 + (j >> 1))}, {V(vE + ((j-1) & 7))}, {e}')
    return L

def max_block(qb, m, t):
    s0 = vS + 16 * qb
    L = [f'v_max3_f32 {V(m)}, {V(s0)}, {V(s0+1)}, {V(s0+2)}', f'v_max3_f32 {V(t)}, {V(s0+3)}, {V(s0+4)}, {V(s0+5)}']
    for k in range(6, 14, 4):
        L += [f'v_max3_f32 {V(m)}, {V(m)}, {V(s0+k)}, {V(s0+k+1)}', f'v_max3_f32 {V(t)}, {V(t)}, {V(s0+k+2)}, {V(s0+k+3)}']
    L += [f'v_max3_f32 {V(m)}, {V(m)}, {V(s0+14)}, {V(s0+15)}', f'v_max_f32 {V(m)}, {V(m)}, {V(t)}', f'v_mov_b32 {V(t)}, {V(m)}',
          's_nop 1', f'v_permlane32_swap_b32 {V(m)}, {V(t)}', 's_nop 0', f'v_max_f32 {V(m)}, {V(m)}, {V(t)}']
    return L

def sm_stream(qb, first, tag):
    s0 = vS + 16 * qb; n0 = vN + 16 * qb
    if first:
        m, t = vE, vE + 1
        L = max_block(qb, m, t)
        for i in range(16): L.append(f'v_sub_f32 {V(s0+i)}, {V(s0+i)}, {V(m)}')
        for i in range(16): L.append(f'v_sub_f32 {V(n0+i)}, 0, {V(m)}')
        L += exp_block(qb)
        L.append(f'v_mov_b32 {V(vL+qb)}, {V(vTs)}')
        return L
    L = exp_block(qb)
    L += [f'v_cmp_lt_f32 vcc, {S(sThr)}, {V(vTs)}', f's_cbranch_vccnz SLOW{qb}{tag}', f'BACK{qb}{tag}:',
          f'v_add_f32 {V(vL+qb)}, {V(vL+qb)}, {V(vTs)}']
    return L

def slow_path(qb, tag=''):
    s0 = vS + 16 * qb; n0 = vN + 16 * qb
    m, t, sc = vE, vE + 1, vE + 2
    L = [f'SLOW{qb}{tag}:', 's_nop 7', 's_nop 7']
    L += max_block(qb, m, t)
    L += [f'v_max_f32 {V(m)}, 0, {V(m)}', f'v_exp_f32 {V(sc)}, -{V(m)}', f'v_sub_f32 {V(t)}, {V(n0)}, {V(m)}']
    for i in range(16): L.append(f'v_mov_b32 {V(n0+i)}, {V(t)}')
    for i in range(16): L.append(f'v_sub_f32 {V(s0+i)}, {V(s0+i)}, {V(m)}')
    L.append(f'v_mul_f32 {V(vL+qb)}, {V(vL+qb)}, {V(sc)}')
    for a in range(4):
        for i in range(0, 16, 4):
            o = Oacc(a, qb) + i
            for k in range(4): L.append(f'v_accvgpr_read_b32 {V(vE+4+k)}, {A(o+k)}')
            for k in range(4): L.append(f'v_mul_f32 {V(vE+4+k)}, {V(vE+4+k)}, {V(sc)}')
            for k in range(4): L.append(f'v_accvgpr_write_b32 {A(o+k)}, {V(vE+4+k)}')
    L += exp_block(qb)
    L += ['s_nop 3', f's_branch BACK{qb}{tag}']
    return L

def k_reads():
    L = []
    for s in range(8):
        if s == 0: L.append(f'ds_read_b128 {V(vKf,4)}, {V(vKb)}')
        else:
            L += [f'v_xor_b32 {V(vAd + (s&1))}, {32*s}, {V(vKb)}', f'ds_read_b128 {V(vKf+4*s,4)}, {V(vAd + (s&1))}']
    L.append(f'v_xor_b32 {V(vKb)}, 0x4000, {V(vKb)}')
    return L

def v_reads():
    L = []
    for a in range(4):
        if a: L.append(f'v_xor_b32 {V(vAd + (a&1))}, {64*a}, {V(vVb)}')
        for u in range(2):
            for wp in range(2):
                ad = V(vVb) if a == 0 else V(vAd + (a&1))
                L.append(f'ds_read_b64_tr_b16 {V(vVf + (a*2+u)*4 + 2*wp, 2)}, {ad} offset:{4096*u + 2048*wp}')
    L.append(f'v_xor_b32 {V(vVb)}, 0x4000, {V(vVb)}')
    return L

def pre_tile():
    L = [f'v_add_u32 {V(vAd+3)}, {S(sM0K)}, {V(vL16)}']
    L += ['s_waitcnt vmcnt(24)'] + flush(0) + k_reads()
    L += ['s_waitcnt vmcnt(16)'] + flush(1) + ['s_waitcnt vmcnt(8)'] + flush(2) + ['s_waitcnt vmcnt(0)'] + flush(3)
    return L

def tile(first, var=0):
    mf = []
    for qb in range(3):
        for s in range(8):
            d = V(vS + 16*qb, 16)
            c = d if s else ('0' if first else V(vN + 16*qb, 16))
            mf.append(f'{MF} {d}, {V(vKf+4*s,4)}, {Qreg(qb,s)}, {c}')
    for qb in range(3):
        for a in range(4):
            for u in range(2):
                d = A(Oacc(a, qb), 16)
                c = '0' if (first and u == 0) else d
                mf.append(f'{MF} {d}, {V(vVf+(a*2+u)*4,4)}, {V(vP+8*qb+4*u,4)}, {c}')
    gaps = [[] for _ in range(48)]
    pre = ['s_waitcnt lgkmcnt(0)']
    gaps[0] += ([] if var else soff_calc(sSo, 2)) + ['s_waitcnt vmcnt(16)']
    spread(gaps, v_reads(), 1, 8)
    kg, vg_ = dma_groups(False), dma_groups(True)
    none = lambda: [[] for _ in range(8)]
    if var == 14: kg, vg_ = (wo_warm(0) if OPT['warm'] else none()), (wo_dma(0) if OPT['pre'] else none())
    if var == 15: kg, vg_ = (wo_dma(1) if OPT['pre'] else none()), (wo_warm(1) if OPT['warm'] else none())
    if var == 15: gaps[0][-1 if False else 0] = f's_waitcnt vmcnt({8 * (OPT["warm"] + OPT["pre"])})'
    kpos = OPT['kpos']; vpos = OPT['vpos']
    for i in range(8): gaps[kpos[i]] += kg[i]
    gaps[vpos[0] - 1].append('s_waitcnt lgkmcnt(0)')
    for i in range(8): gaps[vpos[i]] += vg_[i]
    sm = OPT['sm']
    for qb in range(3): spread(gaps, sm_stream(qb, first, f'_{var}' if var else ''), sm[qb][0], sm[qb][1])
    kw = OPT['kw']
    nv = sum(1 for p in vpos if p < kw)
    if var != 15:
        gaps[kw].insert(0, f's_waitcnt vmcnt({8 + 8 * OPT["warm"] + nv * OPT["pre"] if var else 16 + nv})')
        spread(gaps, k_reads(), kw, 46)
    gaps[47] += [f's_xor_b32 {S(sM0K)}, {S(sM0K)}, 0x4000', f's_add_u32 {S(sT)}, {S(sT)}, 1']
    return weave(mf, gaps, pre)

vI = 240
def ident_init():
    t, a, b = 16, 17, 18
    L = [f'v_lshrrev_b32 {V(t)}, 4, {V(vL16)}',
         f'v_bfe_u32 {V(a)}, {V(t)}, 1, 1', f'v_bfe_u32 {V(b)}, {V(t)}, 3, 2', f'v_lshl_add_u32 {V(a)}, {V(b)}, 1, {V(a)}',
         f'v_bfe_u32 {V(b)}, {V(t)}, 2, 1', f'v_bfe_u32 {V(b+1)}, {V(t)}, 5, 1', f'v_xor_b32 {V(b)}, {V(b)}, {V(b+1)}',
         f'v_lshl_add_u32 {V(a)}, {V(b)}, 4, {V(a)}',
         f'v_and_b32 {V(b)}, 1, {V(t)}', f'v_lshlrev_b32 {V(b)}, 4, {V(b)}', f'v_mov_b32 {V(b+1)}, 0x3f80', f'v_lshlrev_b32 {V(b)}, {V(b)}, {V(b+1)}']
    for i in range(8):
        L += [f'v_cmp_eq_u32 vcc, {i}, {V(a)}', 's_nop 1', f'v_cndmask_b32 {V(vI+i)}, 0, {V(b)}, vcc']
    return L

def combine():
    L = read_q(LDS_Q2) + ['COMBINE:']
    for qb in range(3):
        L += [f'v_mov_b32 {V(17+2*qb)}, {V(vL+qb)}', f'v_mov_b32 {V(16+2*qb)}, {V(vN+16*qb)}', 's_nop 0',
              f'v_permlane32_swap_b32 {V(17+2*qb)}, {V(vL+qb)}', 's_nop 0',
              f'v_add_f32 {V(17+2*qb)}, {V(17+2*qb)}, {V(vL+qb)}']
    L += [f's_lshl_b32 {S(sTmp)}, {S(sWv)}, 3', f'v_add_u32 {V(vAd)}, {S(sTmp)}, {V(vStat)}']
    for qb in range(3):
        L.append(f'ds_write_b64 {V(vAd)}, {V(16+2*qb,2)} offset:{1024*qb}')
    BL = [24 + 16*k for k in range(7)] + [176, 192]
    def rd(k):
        r, qb = 1 + k // 3, k % 3
        return [f'v_accvgpr_read_b32 {V(BL[k]+i)}, {A(Oacc(r,qb)+i)}' for i in range(16)]
    for k in range(8): L += rd(k)
    for r in range(1, 4):
        L += [f's_xor_b32 {S(sTmp)}, {S(sWv)}, {r}']
        if r == 1: L += [f's_mul_i32 {S(sTmp)}, {S(sTmp)}, 6144', f's_add_u32 {S(sTmp)}, {S(sTmp)}, {LDS_XR}']
        else: L += [f's_lshl_b32 {S(sTmp)}, {S(sTmp)}, 15']
        L += [f'v_add_u32 {V(vAd+r)}, {S(sTmp)}, {V(vL16)}']
    L += st2() + ['s_waitcnt lgkmcnt(0)', 's_barrier'] + st2(1)
    ST = [136, 192, 200]
    for qb in range(3):
        for hh in range(2): L.append(f'ds_read_b128 {V(ST[qb]+4*hh,4)}, {V(vStat)} offset:{1024*qb + 16*hh}')
    for qb in range(3):
        n = lambda r: V(ST[qb] + 2*r); l = lambda r: V(ST[qb] + 2*r + 1)
        L += [f's_waitcnt lgkmcnt({4 - 2*qb})']
        L += [f'v_min3_f32 {V(22)}, {n(0)}, {n(1)}, {n(2)}', f'v_min_f32 {V(22)}, {V(22)}, {n(3)}']
        for r in range(4): L.append(f'v_sub_f32 {n(r)}, {V(22)}, {n(r)}')
        L.append(f'v_sub_f32 {V(16+2*qb)}, {V(22)}, {V(16+2*qb)}')
        for r in range(4): L.append(f'v_exp_f32 {n(r)}, {n(r)}')
        L += [f'v_exp_f32 {V(16+2*qb)}, {V(16+2*qb)}', f'v_mul_f32 {V(23)}, {n(0)}, {l(0)}']
        for r in range(1, 4): L.append(f'v_fma_f32 {V(23)}, {n(r)}, {l(r)}, {V(23)}')
        L += [f'v_rcp_f32 {V(23)}, {V(23)}', 's_nop 0', f'v_mul_f32 {V(16+2*qb)}, {V(16+2*qb)}, {V(23)}']
    L += rd(8)
    roff = {1: 0, 2: 0, 3: 24576}
    for k in range(9):
        r, qb = 1 + k // 3, k % 3; b = BL[k]
        for i in range(8): L.append(f'v_pk_mul_f32 {V(b+2*i,2)}, {V(b+2*i,2)}, {V(16+2*qb,2)} op_sel_hi:[1,0]')
        for i in range(8): L.append(f'v_cvt_pk_bf16_f32 {V(b+i)}, {V(b+2*i)}, {V(b+2*i+1)}')
        for u in range(2): L.append(f'ds_write_b128 {V(vAd+r)}, {V(b+4*u,4)} offset:{roff[r] + (qb*2+u)*1024}')
    L += ['s_waitcnt lgkmcnt(12)']
    for qb in range(3):
        b = 24 + 16*qb
        for i in range(16): L.append(f'v_accvgpr_read_b32 {V(b+i)}, {A(Oacc(0,qb)+i)}')
        for i in range(8): L.append(f'v_pk_mul_f32 {V(b+2*i,2)}, {V(b+2*i,2)}, {V(16+2*qb,2)} op_sel_hi:[1,0]')
    L += [f's_mul_i32 {S(sTmp)}, {S(sWv)}, 6144', f's_add_u32 {S(sTmp)}, {S(sTmp)}, {LDS_XR}', f'v_add_u32 {V(vAd)}, {S(sTmp)}, {V(vL16)}',
          f's_lshl_b32 {S(sTmp)}, {S(sWv)}, 15', f'v_add_u32 {V(vAd+1)}, {S(sTmp)}, {V(vL16)}']
    L += st2() + ['s_waitcnt lgkmcnt(0)', 's_barrier'] + st2(1)
    rds = []; mfs = []
    for r in range(1, 4):
        for u in range(2):
            for qb in range(3):
                d = 72 + len(rds) * 4
                rds.append(f'ds_read_b128 {V(d,4)}, {V(vAd if r == 1 else vAd+1)} offset:{roff[r] + (qb*2+u)*1024}')
                mfs.append(f'{MF} {V(24+16*qb,16)}, {V(vI+4*u,4)}, {V(d,4)}, {V(24+16*qb,16)}')
    L += rds[:12]
    for k in range(18):
        if k < 6: L += [rds[12+k], 's_waitcnt lgkmcnt(12)']
        else: L += [f's_waitcnt lgkmcnt({17-k})']
        L.append(mfs[k])
    L += st2()
    L += [f's_cmp_eq_u32 {S(sT)}, 16', 's_cbranch_scc0 CB1', 's_nop 7', 's_nop 3', 's_branch CB2', 'CB1:']
    L += soff_calc(sSo, 1)
    for i in range(8):
        if i % 4 == 0: L += [f's_add_u32 m0, {S(sM0K)}, {24576 + 4096*(i>>2)}', 's_nop 0']
        L.append(f'buffer_load_dwordx4 {V(vOffV)}, {S(sV,4)}, {S(sSo + (i>>2))} offen offset:{1024*(i&3)}{KVF} lds')
    L += ['CB2:']
    for qb in range(3):
        for i in range(8): L.append(f'v_cvt_pk_bf16_f32 {V(vVf+8*qb+i)}, {V(24+16*qb+2*i)}, {V(24+16*qb+2*i+1)}')
        L.append(f's_add_u32 {S(sTmp)}, {S(sOb)}, {qb*262144}')
        for u in range(2):
            L.append(f'buffer_store_dwordx4 {V(vVf+8*qb+4*u,4)}, {V(vL16)}, {S(sO,4)}, {S(sTmp)} offen offset:{1024*u}{STF}')
    L += [f's_add_u32 {S(sOb)}, {S(sOb)}, {12*262144}', 's_nop 1'] + st2()
    return L

def advW():
    return [f's_add_u32 {S(sTmp)}, {S(sNW)}, {S(sRt)}', f's_and_b32 {S(sTmp)}, {S(sTmp)}, 7', f's_and_b32 {S(sTmp2)}, {S(sNW)}, 8',
            f's_or_b32 {S(sTmp)}, {S(sTmp)}, {S(sTmp2)}', f's_mul_i32 {S(sWs)}, {S(sTmp)}, 81920', f's_add_u32 {S(sWs)}, {S(sWs)}, {S(sWs0)}',
            f's_add_u32 {S(sNW)}, {S(sNW)}, 1']
def advO():
    return [f's_add_u32 {S(sTmp)}, {S(sNO)}, {S(sRt)}', f's_and_b32 {S(sTmp)}, {S(sTmp)}, 7', f's_and_b32 {S(sTmp2)}, {S(sNO)}, 8',
            f's_or_b32 {S(sTmp)}, {S(sTmp)}, {S(sTmp2)}', f's_lshl_b32 {S(sTmp)}, {S(sTmp)}, 12', f's_add_u32 {S(sOsA)}, {S(sOs0)}, {S(sTmp)}',
            f's_xor_b32 {S(sOsB)}, {S(sOsA)}, 0x40000', f's_add_u32 {S(sNO)}, {S(sNO)}, 1']
slot = lambda n: 8192 * ((n + 1) & 3)
def wo_dma(n):
    G = [[f's_add_u32 m0, {S(sM)}, {slot(n) + 1024*i}', f's_add_u32 {S(sTmp)}, {S(sWs)}, {i*10240}',
          f'buffer_load_dwordx4 {V(vOffW2)}, {S(sW,4)}, {S(sTmp)} offen{K2F} lds'] for i in range(8)]
    G[0] = advW() + G[0]
    return G
def wo_warm(k):
    G = [[f's_mov_b32 m0, {LDS_DUMMY}', f's_add_u32 {S(sTmp)}, {S(sSo)}, {i*10240}',
          f'buffer_load_dwordx4 {V(vOffW2)}, {S(sW,4)}, {S(sTmp)} offen{K2F} lds'] for i in range(8)]
    G[0] = [f's_add_u32 {S(sTmp)}, {S(sRt)}, {k}', f's_and_b32 {S(sTmp)}, {S(sTmp)}, 7', f's_or_b32 {S(sTmp)}, {S(sTmp)}, 8',
            f's_mul_i32 {S(sSo)}, {S(sTmp)}, 81920', f's_add_u32 {S(sSo)}, {S(sSo)}, {S(sWs0)}'] + G[0]
    return G

def op_setup():
    mi, ni, q = sOsA, sOsB, sG
    L = [f's_mov_b32 {S(sW)}, s48', f's_and_b32 {S(sW+1)}, s49, 0xffff', f's_mov_b32 {S(sW+2)}, 5242880',
         f's_mov_b32 {S(sX)}, s50', f's_and_b32 {S(sX+1)}, s51, 0xffff', f's_mov_b32 {S(sX+2)}, 1966080',
         f's_add_u32 {S(sTag)}, {S(sGen)}, 0x9e3779b1', f's_lshl_b32 {S(sM)}, {S(sWv)}, 15',
         f's_lshr_b32 {S(sTmp)}, s2, 3', f's_mul_i32 {S(mi)}, {S(sTmp)}, 52', f's_lshr_b32 {S(mi)}, {S(mi)}, 8',
         f's_mul_i32 {S(ni)}, {S(mi)}, 5', f's_sub_u32 {S(ni)}, {S(sTmp)}, {S(ni)}',
         f's_mul_i32 {S(sRt)}, {S(mi)}, 43', f's_lshr_b32 {S(sRt)}, {S(sRt)}, 5', f's_mul_i32 {S(sTmp)}, {S(ni)}, 52', f's_lshr_b32 {S(sTmp)}, {S(sTmp)}, 5',
         f's_add_u32 {S(sRt)}, {S(sRt)}, {S(sTmp)}', f's_mov_b32 {S(sNW)}, 0', f's_mov_b32 {S(sNO)}, 0',
         's_and_b32 s3, s2, 1', 's_mul_i32 s3, s3, 5', f's_add_u32 {S(ni)}, {S(ni)}, s3',
         f's_bfe_u32 {S(q)}, s2, 0x10001', f's_cmp_ge_u32 {S(mi)}, 3', 's_cselect_b32 s3, 2, 0', f's_cselect_b32 {S(sTmp)}, 3, 0',
         f's_add_u32 {S(q)}, {S(q)}, s3', f's_sub_u32 {S(mi)}, {S(mi)}, {S(sTmp)}', f's_mul_i32 s3, {S(q)}, 3', f's_add_u32 {S(mi)}, {S(mi)}, s3',
         f's_mul_i32 {S(sWs0)}, {S(sWv)}, 1310720', f's_lshl_b32 s3, {S(ni)}, 7', f's_add_u32 {S(sWs0)}, {S(sWs0)}, s3',
         f's_lshr_b32 {S(sTmp)}, {S(sWv)}, 1', f's_lshl_b32 s3, {S(mi)}, 1', f's_add_u32 s3, s3, {S(sTmp)}',
         f's_lshl_b32 {S(sOs0)}, s3, 18', f's_lshl_b32 {S(sTmp2)}, {S(sWv)}, 16', f's_add_u32 {S(sOs0)}, {S(sOs0)}, {S(sTmp2)}',
         f's_mul_i32 {S(sOut)}, s3, 81920', f's_mul_i32 {S(sTmp)}, {S(sBr)}, 1280', f's_add_u32 {S(sOut)}, {S(sOut)}, {S(sTmp)}',
         f's_lshl_b32 {S(sTmp)}, {S(ni)}, 7', f's_add_u32 {S(sOut)}, {S(sOut)}, {S(sTmp)}',
         f's_and_b32 {S(sTmp)}, {S(sWv)}, 1', f's_lshl_b32 {S(sTmp)}, {S(sTmp)}, 6', f's_add_u32 {S(sOut)}, {S(sOut)}, {S(sTmp)}',
         f's_lshl_b32 s3, {S(sBr)}, 10', f's_lshl_b32 {S(sFlg)}, {S(sBp)}, 7', f's_add_u32 {S(sFlg)}, {S(sFlg)}, s3',
         f's_lshl_b32 {S(sTmp)}, {S(sH)}, 2', f's_add_u32 {S(sFlg)}, {S(sFlg)}, {S(sTmp)}',
         f's_lshl_b32 {S(sPoll)}, {S(q)}, 8', f's_add_u32 {S(sPoll)}, {S(sPoll)}, s3', f's_lshl_b32 {S(sTmp)}, {S(sWv)}, 5', f's_add_u32 {S(sPoll)}, {S(sPoll)}, {S(sTmp)}',
         f'v_bfe_u32 v16, {V(vL16)}, 8, 1', 'v_lshlrev_b32 v16, 6, v16', f'v_and_b32 v17, 0x70, {V(vL16)}', 'v_xor_b32 v16, v16, v17',
         f'v_lshrrev_b32 v17, 7, {V(vL16)}', 'v_mul_u32_u24 v17, 0x500, v17', f'v_add_u32 {V(vOffW2)}, v16, v17',
         f's_cmp_eq_u32 {S(sWv)}, 0', 's_cbranch_scc0 NOCLR',
         f'v_lshlrev_b32 v16, 5, {V(vL16)}', f'v_mov_b32 v17, {S(sGen)}', f'v_mov_b32 v18, {LDS_CNT}', 'v_mov_b32 v19, 0', 's_mov_b64 exec, 3',
         f'buffer_store_dword v17, v16, {S(sF,4)}, {S(sFlg)} offen sc1', 'ds_write_b32 v18, v19', 's_mov_b64 exec, -1', 's_nop 1', 'NOCLR:']
    return L

def publish(last, tag):
    return [f'v_mov_b32 v16, {LDS_CNT}', 'v_mov_b32 v17, 1', 's_mov_b64 exec, 1', 'ds_add_rtn_u32 v18, v16, v17', f'v_mov_b32 v19, {S(sTag)}',
            'v_mov_b32 v20, 0', 's_waitcnt lgkmcnt(0)', f'v_cmp_eq_u32 vcc, {last}, v18', f's_cbranch_vccz {tag}',
            f'buffer_store_dword v19, v20, {S(sF,4)}, {S(sFlg)} offen sc1', f'{tag}:', 's_mov_b64 exec, -1', f's_add_u32 {S(sFlg)}, {S(sFlg)}, 512', 's_nop 0']

def oproj():
    vRd, vPo, vOa, vOf, vWf = 2, 4, 5, 16, 144
    L = []
    wd = lambda n: sum(wo_dma(n), [])
    pl = f'buffer_load_dword v6, {V(vPo)}, {S(sF,4)}, {S(sPoll)} offen sc1'
    L += [f'v_lshrrev_b32 v11, 4, {V(vL16)}',
          'v_lshrrev_b32 v12, 5, v11', 'v_bfe_u32 v13, v11, 2, 2', 'v_lshlrev_b32 v14, 3, v12', 'v_add_u32 v14, v14, v13',
          'v_lshlrev_b32 v14, 7, v14', 'v_lshrrev_b32 v13, 1, v13', f's_and_b32 {S(sTmp)}, {S(sWv)}, 1', f'v_xor_b32 v13, {S(sTmp)}, v13',
          'v_lshlrev_b32 v13, 6, v13', 'v_add_u32 v14, v14, v13',
          'v_and_b32 v13, 16, v11', 'v_lshlrev_b32 v13, 1, v13', 'v_add_u32 v14, v14, v13',
          'v_and_b32 v13, 1, v11', 'v_lshlrev_b32 v13, 4, v13', 'v_add_u32 v14, v14, v13',
          'v_and_b32 v13, 2, v11', 'v_lshlrev_b32 v13, 2, v13', 'v_add_u32 v14, v14, v13',
          f'v_add_u32 {V(vRd)}, {S(sM)}, v14', f'v_xor_b32 {V(vRd+1)}, 64, {V(vRd)}',
          'v_and_b32 v13, 31, v11', 'v_mul_u32_u24 v13, 0xa00, v13', 'v_lshlrev_b32 v12, 4, v12', f'v_add_u32 {V(vOa)}, v12, v13',
          'v_and_b32 v13, 7, v11', 'v_lshlrev_b32 v13, 2, v13', 'v_and_b32 v12, 8, v11', 'v_lshlrev_b32 v12, 4, v12', f'v_add_u32 {V(vPo)}, v12, v13', pl]
    for i in range(64): L.append(f'v_accvgpr_write_b32 {A(i)}, 0')
    L += ['s_waitcnt vmcnt(0)'] + publish(7, 'PUB2') + stamp()
    L += ['s_cmp_ge_u32 s2, 240', 's_cbranch_scc1 NOTILE']
    def wreads(n):
        return [f'ds_read_b64_tr_b16 {V(vWf + 32*(n&1) + (ks*2+an)*4 + 2*wp, 2)}, {V(vRd+an)} offset:{slot(n) + 2048*ks + 512*wp}'
                for ks in range(4) for an in range(2) for wp in range(2)]
    def oloads(n):
        G = [[f'buffer_load_dwordx4 {V(vOf + 32*(n&3) + (ks*2+aq)*4, 4)}, {V(vL16)}, {S(sO,4)}, {S(sOsA+aq)} offen offset:{1024*ks} sc1']
             for ks in range(4) for aq in range(2)]
        G[0] = advO() + G[0]
        return G
    ol = lambda n: sum(oloads(n), [])
    L += wd(0) + [f'v_cmp_ne_u32 vcc, {S(sTag)}, v6', 's_cbranch_vccnz PATHB']
    L += ol(0) + wd(1) + ol(1) + ['s_waitcnt vmcnt(24)'] + wreads(0) + wd(2) + ol(2) + wd(3) + ['s_branch PATHA']
    L += ['PATHB:'] + wd(1) + wd(2) + wd(3)
    L += [f's_mov_b32 {S(sG)}, {SPIN}', 'POLL:', pl, f's_sub_u32 {S(sG)}, {S(sG)}, 1',
          's_cbranch_scc1 POLLED', 's_waitcnt vmcnt(0)', f'v_cmp_ne_u32 vcc, {S(sTag)}, v6', 's_cbranch_vccnz POLL', 'POLLED:']
    L += ['s_waitcnt vmcnt(0)'] + wreads(0) + ol(0) + ol(1) + ol(2) + ['s_waitcnt vmcnt(8)', 'PATHA:'] + stamp()
    def body(n, w, o, wait):
        mf = []
        for ks in range(4):
            for an in range(2):
                for aq in range(2):
                    d = A((an*2+aq)*16, 16)
                    mf.append(f'{MF} {d}, {V(vWf+32*(n&1)+(ks*2+an)*4,4)}, {V(vOf+32*(n&3)+(ks*2+aq)*4,4)}, {d}')
        gaps = [[] for _ in range(16)]
        if n != 15: spread(gaps, wreads(n + 1), 0, 7)
        G = (wo_dma(n) if w else []) + (oloads(n + 3) if o else [])
        if G: spread_groups(gaps, G, 0, 15)
        return weave(mf, gaps, [f's_waitcnt vmcnt({wait}) lgkmcnt(0)'])
    L += [f's_mov_b32 {S(sG)}, 0', 'OP_LOOP:']
    for b in range(4): L += body(b, True, True, 32)
    L += [f's_add_u32 {S(sG)}, {S(sG)}, 1', f's_cmp_lt_u32 {S(sG)}, 3', 's_cbranch_scc1 OP_LOOP']
    L += body(12, False, True, 32) + body(13, False, False, 24) + body(14, False, False, 8) + body(15, False, False, 0)
    L += stamp() + ['s_nop 7', 's_nop 7', 's_barrier']
    for a in range(1, 4):
        an, aq = a >> 1, a & 1
        L += [f's_xor_b32 {S(sTmp)}, {S(sWv)}, {an | (aq << 1)}', f's_mul_i32 {S(sTmp)}, {S(sTmp)}, 12288', f'v_add_u32 {V(vAd)}, {S(sTmp)}, {V(vL16)}']
        for i in range(4): L.append(f'ds_write_b128 {V(vAd)}, {A(a*16+4*i,4)} offset:{(a-1)*4096 + 1024*i}')
    L += [f's_mul_i32 {S(sTmp)}, {S(sWv)}, 12288', f'v_add_u32 {V(vAd)}, {S(sTmp)}, {V(vL16)}']
    for i in range(16): L.append(f'v_accvgpr_read_b32 {V(16+i)}, {A(i)}')
    L += ['s_waitcnt lgkmcnt(0)', 's_barrier']
    for k in range(12): L.append(f'ds_read_b128 {V(32+4*k,4)}, {V(vAd)} offset:{1024*k}')
    for a in range(3):
        L += [f's_waitcnt lgkmcnt({8-4*a})']
        for i in range(8): L.append(f'v_pk_add_f32 {V(16+2*i,2)}, {V(16+2*i,2)}, {V(32+16*a+2*i,2)}')
    for i in range(8): L.append(f'v_cvt_pk_bf16_f32 {V(80+i)}, {V(16+2*i)}, {V(17+2*i)}')
    for u in range(2): L.append(f'buffer_store_dwordx4 {V(80+4*u,4)}, {V(vOa)}, {S(sX,4)}, {S(sOut)} offen offset:{32*u}')
    L += ['s_branch K1_FIN', 'NOTILE:', 's_cmp_eq_u32 s2, 255', 's_cbranch_scc0 K1_FIN', f's_cmp_eq_u32 {S(sWv)}, 0', 's_cbranch_scc0 K1_FIN']
    L += [f's_mov_b32 {S(sG)}, {SPIN}', 'GPOLL:', f'buffer_load_dwordx4 v[16:19], {V(vL16)}, {S(sF,4)}, 0 offen sc1',
          f'buffer_load_dwordx4 v[20:23], {V(vL16)}, {S(sF,4)}, 0 offen offset:1024 sc1', f's_sub_u32 {S(sG)}, {S(sG)}, 1',
          's_cbranch_scc1 GDONE', 's_waitcnt vmcnt(0)']
    for i in range(8): L.append(f'v_xor_b32 {V(16+i)}, {S(sTag)}, {V(16+i)}')
    L += ['v_or3_b32 v16, v16, v17, v18', 'v_or3_b32 v19, v19, v20, v21', 'v_or3_b32 v16, v16, v22, v23', 'v_or_b32 v16, v16, v19',
          'v_cmp_ne_u32 vcc, 0, v16', 's_cbranch_vccnz GPOLL', 'GDONE:', 's_waitcnt vmcnt(0)', f'v_mov_b32 v17, {S(sTag)}', 'v_mov_b32 v16, 4096', 's_mov_b64 exec, 1',
          f'buffer_store_dword v17, v16, {S(sF,4)}, 0 offen sc1', 's_mov_b64 exec, -1', 's_branch K1_FIN']
    return L

def k1():
    L = k1_prologue()
    L += k1_qproj()
    L += stamp()
    L += pre_tile() + op_setup() + ident_init() + tile(True)
    L += ['LOOP:'] + tile(False)
    L += [f's_cmp_eq_u32 {S(sT)}, 14', 's_cbranch_scc1 PEEL', f's_cmp_lg_u32 {S(sT)}, 8', 's_cbranch_scc1 LOOP', 's_nop 7', 's_nop 7']
    L += stamp()
    L += combine()
    L += [f's_cmp_eq_u32 {S(sT)}, 16', 's_cbranch_scc1 OPROJ']
    L += stamp()
    L += tile(True) + ['s_waitcnt vmcnt(16)'] + publish(3, 'PUB1')
    L += ['s_branch LOOP']
    L += ['PEEL:'] + tile(False, 14) + tile(False, 15) + stamp() + ['s_nop 7', 's_nop 7', 's_branch COMBINE']
    L += ['OPROJ:'] + oproj()
    for tg in ('', '_14', '_15'):
        for qb in range(3): L += slow_path(qb, tg)
    L += ['K1_FIN:'] + stamp_dump(0, sWv, sTmp)
    L += ['K1_END:', 's_endpgm']
    return L

def emit(kname, L, nv, acc):
    out = [f'.globl {kname}', '.p2align 8', f'.type {kname},@function', f'{kname}:']
    for t in L: out.append(t if is_label(t) else '    ' + t)
    desc = ['.p2align 6', f'.amdhsa_kernel {kname}', f'  .amdhsa_next_free_vgpr {nv}', '  .amdhsa_next_free_sgpr 102',
            f'  .amdhsa_accum_offset {acc}', '  .amdhsa_group_segment_fixed_size 0', '  .amdhsa_kernarg_size 104',
            '  .amdhsa_user_sgpr_count 2', '  .amdhsa_user_sgpr_kernarg_segment_ptr 1', '  .amdhsa_system_sgpr_workgroup_id_x 1',
            '.end_amdhsa_kernel']
    return out, desc

def main():
    a = k1()
    bad = check_seq(code_only(a), 'k1')
    k1n = NAME + '_kernel'
    hdr = ['; @launch grid=(256,1,1) block=(256,1,1) lds=163840', '.amdgcn_target "amdgcn-amd-amdhsa--gfx950"', '.text']
    c1, d1 = emit(k1n, a, 512, 256)
    txt = '\n'.join(hdr + c1 + ['.section .rodata,"a"'] + d1) + '\n'
    open(sys.argv[1], 'w').write(txt)
    print('hazards', bad, 'lines', len(a), 'stamps', stamp_n[0])
main()
```

```python
import sys, struct, math
sys.path.insert(0, 'gen')
from asmlib import *

NAME = 'concat_heads__gqa_block_cached__mha_block_cached__near_ridge'
def f32(x): return '0x%08x' % struct.unpack('<I', struct.pack('<f', x))[0]
CSCALE = f32(128 ** -0.5 * math.log2(math.e))

OPT = dict(dly=8, wrend=11, pre=2, oflag='', k2diag=0, k2rot=8, kvflag='nt', early=8, per=4, stamps=0, rot=0, half=0, qrot=1, nA=2, wxflag='', k2flag='', stflag='sc1')
OPT.update(kpos=[1,4,7,10,13,16,19,22], vpos=[24,27,30,33,36,39,42,45], sm=[(10,19),(20,29),(30,39)], kw=40)
for a in sys.argv[2:]:
    k, v = a.split('=')
    OPT[k] = eval(v) if v[0] in '[(' else (v if not v.lstrip('-').isdigit() else int(v))
fl = lambda k: (' ' + OPT[k].replace('+', ' ')) if OPT[k] else ''
KVF, WXF, K2F, STF = fl('kvflag'), fl('wxflag'), fl('k2flag'), fl('stflag')

def R(f, a, n=1):
    return f'{f}{a}' if n == 1 else f'{f}[{a}:{a+n-1}]'
V = lambda a, n=1: R('v', a, n)
A = lambda a, n=1: R('a', a, n)
S = lambda a, n=1: R('s', a, n)
MF = 'v_mfma_f32_32x32x16_bf16'

sK, sV, sW, sX, sO = 4, 8, 12, 16, 20
sWv, sBr, sH, sBp, sT, sSo, sSo2, sM0K, sW8, sTmp, sTmp2 = 24, 25, 26, 27, 28, 29, 30, 31, 32, 33, 34
sWb, sXb, sWm, sXm, sThr, sOb, sQw, sRot = 35, 36, 37, 38, 39, 56, 57, 58
sCh, sCw, sCx = 44, 45, 46
sDbg = 60
sSt = 64
vL16, vKb, vVb, vOffK, vOffV = 0, 1, 2, 3, 7
vL, vTs, vAd, vE, vP, vS, vN, vKf, vVf, vQ2 = 8, 11, 12, 16, 24, 48, 96, 144, 176, 208
vOffW, vOffX, vWA, vXA = 240, 241, 243, 247
vStat = 255
def Qreg(qb, s):
    return A(192 + qb * 32 + 4 * s, 4) if qb < 2 else V(vQ2 + 4 * s, 4)
def Oacc(a, qb): return (a * 3 + qb) * 16
LDS_Q1, LDS_Q2, LDS_STAT, LDS_XR = 81920, 131072, 155648, 131072
SB = [0, 40960, 81920, 122880]
LDS_DUMMY = 158720
LDS_CNT = 163328
FLAG_OFF = 12582912
sF = 92
sRt, sNW, sNO, sWs0, sOs0, sWs, sOsA, sOsB, sOut, sFlg, sPoll, sG, sTag, sGen, sM = 35, 36, 37, 38, 40, 41, 42, 43, 44, 45, 46, 47, 52, 53, 57
vOffW2 = 248
SPIN = 30000

stamp_n = [0]
def stamp():
    if not OPT['stamps']: return []
    i = stamp_n[0]; stamp_n[0] += 1
    return [f's_memrealtime {S(sSt + 2 * i, 2)}']

def st2(w=0):
    if OPT['stamps'] != 2: return []
    return stamp() + (['s_waitcnt lgkmcnt(0)'] if w else [])
def stamp_init(koff):
    if not OPT['stamps']: return []
    stamp_n[0] = 0
    return [f's_load_dwordx2 {S(sDbg,2)}, s[0:1], 96', 's_memtime s[96:97]'] + stamp()
def stamp_dump(koff, swv, stmp):
    if not OPT['stamps']: return []
    L = ['s_waitcnt vmcnt(0)'] + stamp() + ['s_memtime s[98:99]', 's_waitcnt lgkmcnt(0)']
    L += [f's_add_u32 {S(sDbg)}, {S(sDbg)}, {(16<<20) + koff}', f's_addc_u32 {S(sDbg+1)}, {S(sDbg+1)}, 0',
          f's_and_b32 {S(sDbg+1)}, {S(sDbg+1)}, 0xffff', f's_mov_b32 {S(sDbg+2)}, 65536', f's_mov_b32 {S(sDbg+3)}, 0x20000',
          f's_lshl_b32 {S(stmp)}, s2, 2', f's_add_u32 {S(stmp)}, {S(stmp)}, {S(swv)}', f's_lshl_b32 {S(stmp)}, {S(stmp)}, 6', 'v_mov_b32 v1, 0']
    for i in range(stamp_n[0]):
        L += [f'v_mov_b32 v2, {S(sSt+2*i)}', f'buffer_store_dword v2, v1, {S(sDbg,4)}, {S(stmp)} offen offset:{4*i}']
    L += ['s_sub_u32 s98, s98, s96', 'v_mov_b32 v2, s98', f'buffer_store_dword v2, v1, {S(sDbg,4)}, {S(stmp)} offen offset:60']
    L += ['s_getreg_b32 s98, hwreg(HW_REG_XCC_ID)', 'v_mov_b32 v2, s98', f'buffer_store_dword v2, v1, {S(sDbg,4)}, {S(stmp)} offen offset:56']
    return L

def k1_prologue():
    L = [
        f's_cmp_ge_u32 s2, {128 if OPT["half"] else 256}', 's_cbranch_scc1 K1_END',
        's_load_dwordx8 s[40:47], s[0:1], 0', 's_load_dwordx8 s[48:55], s[0:1], 40',
        f's_load_dwordx2 {S(sO,2)}, s[0:1], 96',
    ]
    L += stamp_init(0)
    L += [
        's_and_b32 s3, s2, 7', f's_lshr_b32 {S(sTmp)}, s2, 3', f's_lshr_b32 {S(sBr)}, s3, 2',
        's_and_b32 s3, s3, 3', 's_lshl_b32 s3, s3, 3', f's_and_b32 {S(sH)}, {S(sTmp)}, 7',
        f's_add_u32 {S(sH)}, {S(sH)}, s3', f's_lshr_b32 {S(sBp)}, {S(sTmp)}, 3',
        'v_lshrrev_b32 v20, 6, v0', 'v_and_b32 v21, 63, v0', 's_nop 0',
        f'v_readfirstlane_b32 {S(sWv)}, v20',
        'v_lshlrev_b32 v0, 4, v21',
        'v_lshrrev_b32 v22, 4, v21',
        'v_and_b32 v23, 15, v21',
        'v_xor_b32 v24, v23, v22', 'v_lshlrev_b32 v24, 4, v24', 'v_lshlrev_b32 v25, 8, v22',
        f'v_add_u32 {V(vOffK)}, v24, v25',
        f'v_xor_b32 {V(vOffK+1)}, 64, {V(vOffK)}', f'v_xor_b32 {V(vOffK+2)}, 0x80, {V(vOffK)}',
        f'v_xor_b32 {V(vOffK+3)}, 0xc0, {V(vOffK)}',
        'v_lshlrev_b32 v24, 2, v22', 'v_xor_b32 v24, v23, v24', 'v_lshlrev_b32 v24, 4, v24',
        f'v_add_u32 {V(vOffV)}, v24, v25', 'v_lshlrev_b32 v25, 13, v22', f'v_add_u32 {V(vOffW)}, v24, v25',
        'v_and_b32 v24, 7, v21', 'v_xor_b32 v24, v24, v22', 'v_lshlrev_b32 v24, 4, v24',
        'v_lshrrev_b32 v25, 3, v21', 'v_mul_u32_u24 v25, 0x500, v25', f'v_add_u32 {V(vOffX)}, v24, v25',
        f'v_xor_b32 {V(vOffX+1)}, 64, {V(vOffX)}',
        f's_lshl_b32 {S(sW8)}, {S(sWv)}, 13', f's_lshl_b32 {S(sM0K)}, {S(sWv)}, 15',
        f's_lshl_b32 {S(sWb)}, {S(sWv)}, 17', f's_lshl_b32 {S(sWm)}, {S(sWv)}, 12',
        f's_mul_i32 {S(sXm)}, {S(sWv)}, 6144', f's_add_u32 {S(sXm)}, {S(sXm)}, 16384',
        f's_lshr_b32 {S(sTmp)}, {S(sWv)}, 1', f's_mul_i32 {S(sXb)}, {S(sTmp)}, 491520',
        f's_and_b32 {S(sTmp2)}, {S(sWv)}, 1', f's_mul_i32 s3, {S(sTmp2)}, 61440', f's_add_u32 {S(sXb)}, {S(sXb)}, s3',
        f's_mov_b32 {S(sThr)}, {f32(256.0)}',
        f's_mul_i32 {S(sQw)}, {S(sTmp)}, {LDS_Q2 - LDS_Q1}', f's_lshl_b32 s3, {S(sTmp2)}, 12',
        f's_add_u32 {S(sQw)}, {S(sQw)}, s3', f's_add_u32 {S(sQw)}, {S(sQw)}, {LDS_Q1}',
        'v_lshrrev_b32 v26, 5, v21', 'v_and_b32 v27, 31, v21', 'v_bfe_u32 v28, v21, 2, 2',
        'v_and_b32 v29, 16, v21', 'v_lshlrev_b32 v29, 1, v29',
        'v_and_b32 v30, 1, v21', 'v_lshlrev_b32 v30, 4, v30', 'v_add_u32 v29, v29, v30',
        'v_and_b32 v30, 2, v21', 'v_lshlrev_b32 v30, 2, v30', 'v_add_u32 v29, v29, v30',
        'v_xor_b32 v30, v26, v23', 'v_lshlrev_b32 v30, 4, v30', 'v_lshlrev_b32 v31, 8, v27',
        'v_add_u32 v30, v30, v31', f'v_add_u32 {V(vKb)}, {S(sM0K)}, v30',
        'v_lshlrev_b32 v30, 2, v26', 'v_add_u32 v30, v30, v28', 'v_lshlrev_b32 v30, 8, v30',
        f'v_xor_b32 v31, {S(sWv)}, v28', 'v_lshlrev_b32 v31, 6, v31', 'v_add3_u32 v30, v30, v31, v29',
        f'v_add_u32 v30, {S(sM0K)}, v30', f'v_add_u32 {V(vVb)}, 0x2000, v30',
        'v_lshlrev_b32 v30, 3, v26', 'v_add_u32 v30, v30, v28', 'v_lshlrev_b32 v30, 8, v30',
        f's_lshl_b32 s3, {S(sTmp2)}, 1', 'v_xor_b32 v31, s3, v28', 'v_lshlrev_b32 v31, 6, v31',
        f'v_add3_u32 {V(vWA)}, v30, v31, v29', f'v_xor_b32 {V(vWA+1)}, 64, {V(vWA)}',
        f'v_add_u32 {V(vWA+2)}, {SB[2]}, {V(vWA)}', f'v_add_u32 {V(vWA+3)}, {SB[2]}, {V(vWA+1)}',
        f's_mul_i32 s3, {S(sTmp)}, 12288', 's_add_u32 s3, s3, 16384',
        'v_bfe_u32 v30, v21, 1, 3', 'v_xor_b32 v30, v30, v26', 'v_lshlrev_b32 v30, 4, v30',
        'v_lshlrev_b32 v31, 7, v27', f'v_add3_u32 {V(vXA)}, v30, v31, s3',
    ]
    for ks in range(1, 4):
        L += [f'v_xor_b32 {V(vXA+ks)}, {32*ks}, {V(vXA)}']
    for ks in range(4):
        L += [f'v_add_u32 {V(vXA+4+ks)}, {SB[2]}, {V(vXA+ks)}']
    L += [f'v_lshlrev_b32 {V(vStat)}, 5, v27', f'v_add_u32 {V(vStat)}, {LDS_STAT}, {V(vStat)}']
    L += [
        's_waitcnt lgkmcnt(0)',
        f's_cmp_eq_u32 {S(sBr)}, 0',
        's_cselect_b64 s[40:41], s[40:41], s[48:49]', 's_cselect_b64 s[42:43], s[42:43], s[50:51]',
        's_cselect_b64 s[44:45], s[44:45], s[52:53]', 's_cselect_b64 s[46:47], s[46:47], s[54:55]',
        f's_lshl_b32 s3, {S(sBp)}, 5', f's_add_u32 s3, s3, {S(sH)}', 's_lshl_b32 s3, s3, 18',
        f's_add_u32 {S(sK)}, s42, s3', f's_addc_u32 {S(sK+1)}, s43, 0', f's_and_b32 {S(sK+1)}, {S(sK+1)}, 0xffff',
        f's_sub_u32 {S(sK+2)}, 0x4000000, s3', f's_mov_b32 {S(sK+3)}, 0x20000',
        f's_add_u32 {S(sV)}, s44, s3', f's_addc_u32 {S(sV+1)}, s45, 0', f's_and_b32 {S(sV+1)}, {S(sV+1)}, 0xffff',
        f's_sub_u32 {S(sV+2)}, 0x4000000, s3', f's_mov_b32 {S(sV+3)}, 0x20000',
        f's_lshl_b32 s3, {S(sH)}, 8',
        f's_add_u32 {S(sW)}, s46, s3', f's_addc_u32 {S(sW+1)}, s47, 0', f's_and_b32 {S(sW+1)}, {S(sW+1)}, 0xffff',
        f's_sub_u32 {S(sW+2)}, 5242880, s3', f's_mov_b32 {S(sW+3)}, 0x20000',
        f's_mul_i32 s3, {S(sBp)}, 122880',
        f's_add_u32 {S(sX)}, s40, s3', f's_addc_u32 {S(sX+1)}, s41, 0', f's_and_b32 {S(sX+1)}, {S(sX+1)}, 0xffff',
        f's_sub_u32 {S(sX+2)}, 983040, s3', f's_mov_b32 {S(sX+3)}, 0x20000',
        f's_mul_i32 s3, {S(sBr)}, 40', 's_add_u32 s3, s3, 32', 's_load_dwordx2 s[48:49], s[0:1], s3', 's_load_dwordx2 s[50:51], s[0:1], 80',
        f's_add_u32 {S(sF)}, {S(sO)}, {FLAG_OFF}', f's_addc_u32 {S(sF+1)}, {S(sO+1)}, 0', f's_load_dword {S(sGen)}, {S(sF,2)}, 16384',
        f's_and_b32 {S(sF+1)}, {S(sF+1)}, 0xffff', f's_mov_b32 {S(sF+2)}, 16512', f's_mov_b32 {S(sF+3)}, 0x20000',
        f's_mul_i32 s3, {S(sBr)}, 6291456',
        f's_add_u32 {S(sO)}, {S(sO)}, s3', f's_addc_u32 {S(sO+1)}, {S(sO+1)}, 0', f's_and_b32 {S(sO+1)}, {S(sO+1)}, 0xffff',
        f's_mov_b32 {S(sO+2)}, 6291456', f's_mov_b32 {S(sO+3)}, 0x20000',
        f's_mul_i32 {S(sOb)}, {S(sBp)}, 768', f's_lshl_b32 s3, {S(sH)}, 3', f's_add_u32 {S(sOb)}, {S(sOb)}, s3',
        f's_lshl_b32 s3, {S(sWv)}, 1', f's_add_u32 {S(sOb)}, {S(sOb)}, s3', f's_lshl_b32 {S(sOb)}, {S(sOb)}, 10',
        f's_mov_b32 {S(sT)}, 0',
    ]
    if OPT['rot']:
        L += [f's_lshr_b32 {S(sRot)}, s2, 3', f's_and_b32 {S(sRot)}, {S(sRot)}, 7']
    else:
        L += [f's_mov_b32 {S(sRot)}, 0']
    return L

def stage_dma(j):
    sb = SB[j % 4]; G = []
    for i in range(4):
        G.append([f's_add_u32 m0, {S(sWm)}, {sb + 1024*i}', f's_add_u32 {S(sTmp)}, {S(sCw)}, {i*32768}',
                  f'buffer_load_dwordx4 {V(vOffW)}, {S(sW,4)}, {S(sTmp)} offen{WXF} lds'])
    for i in range(6):
        G.append([f's_add_u32 m0, {S(sXm)}, {sb + 1024*i}', f's_add_u32 {S(sTmp)}, {S(sCx)}, {i*10240}',
                  f'buffer_load_dwordx4 {V(vOffX + (i&1))}, {S(sX,4)}, {S(sTmp)} offen{WXF} lds'])
    G[-1] += [f's_add_u32 {S(sCh)}, {S(sCh)}, 1', f's_cmp_eq_u32 {S(sCh)}, 10', f's_cselect_b32 {S(sCh)}, 0, {S(sCh)}',
              f's_lshl_b32 {S(sCw)}, {S(sCh)}, 19', f's_add_u32 {S(sCw)}, {S(sCw)}, {S(sWb)}',
              f's_lshl_b32 {S(sCx)}, {S(sCh)}, 7', f's_add_u32 {S(sCx)}, {S(sCx)}, {S(sXb)}']
    return G

def soff_calc(dst, tadd):
    return [f's_add_u32 {S(sTmp)}, {S(sT)}, {tadd}', f's_lshr_b32 {S(sTmp2)}, {S(sTmp)}, 3', f's_lshl_b32 {S(sTmp2)}, {S(sTmp2)}, 25',
            f's_add_u32 {S(sTmp)}, {S(sTmp)}, {S(sRot)}',
            f's_and_b32 {S(sTmp)}, {S(sTmp)}, 7', f's_lshl_b32 {S(sTmp)}, {S(sTmp)}, 15', f's_add_u32 {S(dst)}, {S(sTmp)}, {S(sTmp2)}',
            f's_add_u32 {S(dst)}, {S(dst)}, {S(sW8)}', f's_add_u32 {S(dst+1)}, {S(dst)}, 4096']

def kv_pre(n):
    p, i = n >> 3, n & 7
    so = 40 + 2 * (p >> 1) + (i >> 2)
    voff = vOffK + (i & 3) if p % 2 == 0 else vOffV
    srd = sK if p % 2 == 0 else sV
    return [f'buffer_load_dwordx4 {A(32*p + 4*i, 4)}, {V(voff)}, {S(srd,4)}, {S(so)} offen offset:{1024*(i&3)}{KVF}']

def spread_groups(gaps, groups, g0, g1):
    n = g1 - g0 + 1
    for k, g in enumerate(groups):
        gaps[g0 + (k * n) // len(groups)].extend(g)

lab_n = [0]
def lab(p='L'):
    lab_n[0] += 1
    return f'{p}{lab_n[0]}'

def k1_qproj():
    L = []
    L += soff_calc(40, 0) + soff_calc(42, 1)
    if OPT['qrot']:
        L += [f's_mul_i32 {S(sCh)}, {S(sBp)}, 5', f's_add_u32 {S(sCh)}, {S(sCh)}, 1', f's_lshr_b32 {S(sCh)}, {S(sCh)}, 1',
              f's_and_b32 {S(sTmp)}, {S(sH)}, 7', f's_add_u32 {S(sCh)}, {S(sCh)}, {S(sTmp)}',
              f's_sub_u32 {S(sTmp)}, {S(sCh)}, 10', f's_cmp_ge_u32 {S(sCh)}, 10', f's_cselect_b32 {S(sCh)}, {S(sTmp)}, {S(sCh)}']
    else:
        L += [f's_mov_b32 {S(sCh)}, 0']
    L += [f's_lshl_b32 {S(sCw)}, {S(sCh)}, 19', f's_add_u32 {S(sCw)}, {S(sCw)}, {S(sWb)}',
          f's_lshl_b32 {S(sCx)}, {S(sCh)}, 7', f's_add_u32 {S(sCx)}, {S(sCx)}, {S(sXb)}']
    L += [f's_cmp_lt_u32 {S(sBp)}, {OPT["nA"]}', 's_cselect_b64 vcc, -1, 0']
    for j in range(3):
        for g in stage_dma(j): L += g
    sk = lab()
    L += [f's_cbranch_vccz {sk}']
    for n in range(32): L += kv_pre(n)
    L += [f'{sk}:']
    Wf = lambda ks, d: 144 + ks * 8 + d * 4
    Xf = lambda ks, qb: 176 + ks * 12 + qb * 4
    late = {7: range(0, 11), 8: range(11, 22), 9: range(22, 32)}
    for j in range(10):
        base = 10 * min(2, 9 - j)
        extraA = 32 if j < 3 else 0
        extraB = {8: 11, 9: 22}.get(j, 0)
        if extraA != extraB:
            l1, l2 = lab(), lab()
            L += [f's_cbranch_vccz {l1}', f's_waitcnt vmcnt({base + extraA})', f's_branch {l2}', f'{l1}:', f's_waitcnt vmcnt({base + extraB})', f'{l2}:']
        else:
            L += [f's_waitcnt vmcnt({base})']
        if j == 0: L += ['s_waitcnt lgkmcnt(0)']
        L += ['s_barrier']
        if j in (0, 9) and OPT['stamps'] == 1: L += stamp() + ['s_waitcnt lgkmcnt(0)']
        b = j % 4; hi = b >> 1; off = (b & 1) * 40960
        def reads(ks):
            r = []
            for d in range(2):
                for wp in range(2):
                    r.append(f'ds_read_b64_tr_b16 {V(Wf(ks,d) + 2*wp, 2)}, {V(vWA + 2*hi + d)} offset:{off + 4096*ks + 1024*wp}')
            for qb in range(3):
                r.append(f'ds_read_b128 {V(Xf(ks,qb), 4)}, {V(vXA + 4*hi + ks)} offset:{off + 4096*qb}')
            return r
        L += reads(0) + reads(1)
        groups = []
        if j + 3 < 10:
            groups = stage_dma(j + 3)
        else:
            for n in late[j]:
                sk = lab()
                groups.append([f's_cbranch_vccnz {sk}'] + kv_pre(n) + [f'{sk}:'])
        mf = []; gaps = [[] for _ in range(24)]
        for ks in range(4):
            for d in range(2):
                for qb in range(3):
                    acc = V(48 + (d * 3 + qb) * 16, 16)
                    c = '0' if (j == 0 and ks == 0) else acc
                    mf.append(f'{MF} {acc}, {V(Wf(ks,d),4)}, {V(Xf(ks,qb),4)}, {c}')
        spread(gaps, reads(2), 0, 4); spread(gaps, reads(3), 6, 10)
        gaps[5].append('s_waitcnt lgkmcnt(7)'); gaps[11].append('s_waitcnt lgkmcnt(7)'); gaps[17].append('s_waitcnt lgkmcnt(0)')
        spread_groups(gaps, groups, 0, 22)
        L += weave(mf, gaps, ['s_waitcnt lgkmcnt(7)'])
    L += ['s_nop 7', 's_nop 3', f'v_add_u32 {V(vAd)}, {S(sQw)}, {V(vL16)}']
    for d in range(2):
        for qb in range(3):
            a0 = 48 + (d * 3 + qb) * 16
            for i in range(16): L.append(f'v_mul_f32 {V(a0+i)}, {CSCALE}, {V(a0+i)}')
            t0 = 144 + (d * 3 + qb) * 8
            for i in range(8): L.append(f'v_cvt_pk_bf16_f32 {V(t0+i)}, {V(a0+2*i)}, {V(a0+2*i+1)}')
            for u in range(2):
                L.append(f'ds_write_b128 {V(vAd)}, {V(t0+4*u,4)} offset:{(qb*8 + 2*d + u)*1024}')
    L += ['s_waitcnt lgkmcnt(0)', 's_barrier']
    L += read_q(LDS_Q1)
    L += ['s_waitcnt lgkmcnt(0)', 's_barrier']
    return L

def read_q(base):
    L = [f'v_add_u32 {V(vAd)}, {base}, {V(vL16)}']
    for qb in range(3):
        for s in range(8):
            L.append(f'ds_read_b128 {Qreg(qb,s)}, {V(vAd)} offset:{(qb*8+s)*1024}')
    return L

def flush(p):
    return [f'ds_write_b128 {V(vAd+3)}, {A(32*p + 4*i, 4)} offset:{8192*p + 1024*i}' for i in range(8)]

def dma_groups(isV):
    G = []
    srd = sV if isV else sK
    for i in range(8):
        g = []
        if i % 4 == 0 and not isV:
            g += [f's_add_u32 m0, {S(sM0K)}, {4096*(i>>2)}', 's_nop 0']
        if i % 4 == 0 and isV:
            g += [f's_add_u32 {S(sTmp)}, {S(sM0K)}, {8192 + 4096*(i>>2)}', f's_and_b32 {S(sTmp2)}, {S(sT)}, 7', f's_cmp_eq_u32 {S(sTmp2)}, 7',
                  f's_cselect_b32 m0, {LDS_DUMMY}, {S(sTmp)}', f's_cselect_b32 {S(sSo + (i>>2))}, 0x7fff0000, {S(sSo + (i>>2))}']
        voff = vOffV if isV else vOffK + (i & 3)
        g.append(f'buffer_load_dwordx4 {V(voff)}, {S(srd,4)}, {S(sSo + (i>>2))} offen offset:{1024*(i&3)}{KVF} lds')
        G.append(g)
    return G

def exp_block(qb):
    s0 = vS + 16 * qb; p0 = vP + 8 * qb
    L = []
    for i in range(16 + 2):
        if i < 16: L.append(f'v_exp_f32 {V(vE + (i & 7))}, {V(s0 + i)}')
        j = i - 2
        if j >= 0:
            e = V(vE + (j & 7))
            if j == 1: L.append(f'v_add_f32 {V(vTs)}, {V(vE)}, {e}')
            elif j > 1: L.append(f'v_add_f32 {V(vTs)}, {V(vTs)}, {e}')
            if j & 1: L.append(f'v_cvt_pk_bf16_f32 {V(p0 + (j >> 1))}, {V(vE + ((j-1) & 7))}, {e}')
    return L

def max_block(qb, m, t):
    s0 = vS + 16 * qb
    L = [f'v_max3_f32 {V(m)}, {V(s0)}, {V(s0+1)}, {V(s0+2)}', f'v_max3_f32 {V(t)}, {V(s0+3)}, {V(s0+4)}, {V(s0+5)}']
    for k in range(6, 14, 4):
        L += [f'v_max3_f32 {V(m)}, {V(m)}, {V(s0+k)}, {V(s0+k+1)}', f'v_max3_f32 {V(t)}, {V(t)}, {V(s0+k+2)}, {V(s0+k+3)}']
    L += [f'v_max3_f32 {V(m)}, {V(m)}, {V(s0+14)}, {V(s0+15)}', f'v_max_f32 {V(m)}, {V(m)}, {V(t)}', f'v_mov_b32 {V(t)}, {V(m)}',
          's_nop 1', f'v_permlane32_swap_b32 {V(m)}, {V(t)}', 's_nop 0', f'v_max_f32 {V(m)}, {V(m)}, {V(t)}']
    return L

def sm_stream(qb, first, tag):
    s0 = vS + 16 * qb; n0 = vN + 16 * qb
    if first:
        m, t = vE, vE + 1
        L = max_block(qb, m, t)
        for i in range(16): L.append(f'v_sub_f32 {V(s0+i)}, {V(s0+i)}, {V(m)}')
        for i in range(16): L.append(f'v_sub_f32 {V(n0+i)}, 0, {V(m)}')
        L += exp_block(qb)
        L.append(f'v_mov_b32 {V(vL+qb)}, {V(vTs)}')
        return L
    L = exp_block(qb)
    L += [f'v_cmp_lt_f32 vcc, {S(sThr)}, {V(vTs)}', f's_cbranch_vccnz SLOW{qb}{tag}', f'BACK{qb}{tag}:',
          f'v_add_f32 {V(vL+qb)}, {V(vL+qb)}, {V(vTs)}']
    return L

def slow_path(qb, tag=''):
    s0 = vS + 16 * qb; n0 = vN + 16 * qb
    m, t, sc = vE, vE + 1, vE + 2
    L = [f'SLOW{qb}{tag}:', 's_nop 7', 's_nop 7']
    L += max_block(qb, m, t)
    L += [f'v_max_f32 {V(m)}, 0, {V(m)}', f'v_exp_f32 {V(sc)}, -{V(m)}', f'v_sub_f32 {V(t)}, {V(n0)}, {V(m)}']
    for i in range(16): L.append(f'v_mov_b32 {V(n0+i)}, {V(t)}')
    for i in range(16): L.append(f'v_sub_f32 {V(s0+i)}, {V(s0+i)}, {V(m)}')
    L.append(f'v_mul_f32 {V(vL+qb)}, {V(vL+qb)}, {V(sc)}')
    for a in range(4):
        for i in range(0, 16, 4):
            o = Oacc(a, qb) + i
            for k in range(4): L.append(f'v_accvgpr_read_b32 {V(vE+4+k)}, {A(o+k)}')
            for k in range(4): L.append(f'v_mul_f32 {V(vE+4+k)}, {V(vE+4+k)}, {V(sc)}')
            for k in range(4): L.append(f'v_accvgpr_write_b32 {A(o+k)}, {V(vE+4+k)}')
    L += exp_block(qb)
    L += ['s_nop 3', f's_branch BACK{qb}{tag}']
    return L

def k_reads():
    L = []
    for s in range(8):
        if s == 0: L.append(f'ds_read_b128 {V(vKf,4)}, {V(vKb)}')
        else:
            L += [f'v_xor_b32 {V(vAd + (s&1))}, {32*s}, {V(vKb)}', f'ds_read_b128 {V(vKf+4*s,4)}, {V(vAd + (s&1))}']
    L.append(f'v_xor_b32 {V(vKb)}, 0x4000, {V(vKb)}')
    return L

def v_reads():
    L = []
    for a in range(4):
        if a: L.append(f'v_xor_b32 {V(vAd + (a&1))}, {64*a}, {V(vVb)}')
        for u in range(2):
            for wp in range(2):
                ad = V(vVb) if a == 0 else V(vAd + (a&1))
                L.append(f'ds_read_b64_tr_b16 {V(vVf + (a*2+u)*4 + 2*wp, 2)}, {ad} offset:{4096*u + 2048*wp}')
    L.append(f'v_xor_b32 {V(vVb)}, 0x4000, {V(vVb)}')
    return L

def pre_tile():
    L = [f'v_add_u32 {V(vAd+3)}, {S(sM0K)}, {V(vL16)}']
    L += ['s_waitcnt vmcnt(24)'] + flush(0) + k_reads()
    L += ['s_waitcnt vmcnt(16)'] + flush(1) + ['s_waitcnt vmcnt(8)'] + flush(2) + ['s_waitcnt vmcnt(0)'] + flush(3)
    return L

def tile(first, var=0):
    mf = []
    for qb in range(3):
        for s in range(8):
            d = V(vS + 16*qb, 16)
            c = d if s else ('0' if first else V(vN + 16*qb, 16))
            mf.append(f'{MF} {d}, {V(vKf+4*s,4)}, {Qreg(qb,s)}, {c}')
    for qb in range(3):
        for a in range(4):
            for u in range(2):
                d = A(Oacc(a, qb), 16)
                c = '0' if (first and u == 0) else d
                mf.append(f'{MF} {d}, {V(vVf+(a*2+u)*4,4)}, {V(vP+8*qb+4*u,4)}, {c}')
    gaps = [[] for _ in range(48)]
    pre = ['s_waitcnt lgkmcnt(0)']
    gaps[0] += ([] if var else soff_calc(sSo, 2)) + ['s_waitcnt vmcnt(16)']
    spread(gaps, v_reads(), 1, 8)
    kg, vg_ = dma_groups(False), dma_groups(True)
    if var: kg, vg_ = [[] for _ in range(8)], [[] for _ in range(8)]
    if var == 15: gaps[0][0] = 's_waitcnt vmcnt(0)'
    kpos = OPT['kpos']; vpos = OPT['vpos']
    for i in range(8): gaps[kpos[i]] += kg[i]
    gaps[vpos[0] - 1].append('s_waitcnt lgkmcnt(0)')
    for i in range(8): gaps[vpos[i]] += vg_[i]
    sm = OPT['sm']
    for qb in range(3): spread(gaps, sm_stream(qb, first, f'_{var}' if var else ''), sm[qb][0], sm[qb][1])
    kw = OPT['kw']
    nv = sum(1 for p in vpos if p < kw)
    if var != 15:
        gaps[kw].insert(0, f's_waitcnt vmcnt({8 if var else 16 + nv})')
        spread(gaps, k_reads(), kw, 46)
    gaps[47] += [f's_xor_b32 {S(sM0K)}, {S(sM0K)}, 0x4000', f's_add_u32 {S(sT)}, {S(sT)}, 1']
    return weave(mf, gaps, pre)

vI = 240
def ident_init():
    t, a, b = 16, 17, 18
    L = [f'v_lshrrev_b32 {V(t)}, 4, {V(vL16)}',
         f'v_bfe_u32 {V(a)}, {V(t)}, 1, 1', f'v_bfe_u32 {V(b)}, {V(t)}, 3, 2', f'v_lshl_add_u32 {V(a)}, {V(b)}, 1, {V(a)}',
         f'v_bfe_u32 {V(b)}, {V(t)}, 2, 1', f'v_bfe_u32 {V(b+1)}, {V(t)}, 5, 1', f'v_xor_b32 {V(b)}, {V(b)}, {V(b+1)}',
         f'v_lshl_add_u32 {V(a)}, {V(b)}, 4, {V(a)}',
         f'v_and_b32 {V(b)}, 1, {V(t)}', f'v_lshlrev_b32 {V(b)}, 4, {V(b)}', f'v_mov_b32 {V(b+1)}, 0x3f80', f'v_lshlrev_b32 {V(b)}, {V(b)}, {V(b+1)}']
    for i in range(8):
        L += [f'v_cmp_eq_u32 vcc, {i}, {V(a)}', 's_nop 1', f'v_cndmask_b32 {V(vI+i)}, 0, {V(b)}, vcc']
    return L

def combine():
    L = read_q(LDS_Q2) + ['COMBINE:']
    for qb in range(3):
        L += [f'v_mov_b32 {V(17+2*qb)}, {V(vL+qb)}', f'v_mov_b32 {V(16+2*qb)}, {V(vN+16*qb)}', 's_nop 0',
              f'v_permlane32_swap_b32 {V(17+2*qb)}, {V(vL+qb)}', 's_nop 0',
              f'v_add_f32 {V(17+2*qb)}, {V(17+2*qb)}, {V(vL+qb)}']
    L += [f's_lshl_b32 {S(sTmp)}, {S(sWv)}, 3', f'v_add_u32 {V(vAd)}, {S(sTmp)}, {V(vStat)}']
    for qb in range(3):
        L.append(f'ds_write_b64 {V(vAd)}, {V(16+2*qb,2)} offset:{1024*qb}')
    BL = [24 + 16*k for k in range(7)] + [176, 192]
    def rd(k):
        r, qb = 1 + k // 3, k % 3
        return [f'v_accvgpr_read_b32 {V(BL[k]+i)}, {A(Oacc(r,qb)+i)}' for i in range(16)]
    for k in range(8): L += rd(k)
    for r in range(1, 4):
        L += [f's_xor_b32 {S(sTmp)}, {S(sWv)}, {r}']
        if r == 1: L += [f's_mul_i32 {S(sTmp)}, {S(sTmp)}, 6144', f's_add_u32 {S(sTmp)}, {S(sTmp)}, {LDS_XR}']
        else: L += [f's_lshl_b32 {S(sTmp)}, {S(sTmp)}, 15']
        L += [f'v_add_u32 {V(vAd+r)}, {S(sTmp)}, {V(vL16)}']
    L += st2() + ['s_waitcnt lgkmcnt(0)', 's_barrier'] + st2(1)
    if OPT['pre']: L += [f's_cmp_eq_u32 {S(sT)}, 16', 's_cbranch_scc0 CP1'] + wd(0) + wd(1) + ['CP1:']
    ST = [136, 192, 200]
    for qb in range(3):
        for hh in range(2): L.append(f'ds_read_b128 {V(ST[qb]+4*hh,4)}, {V(vStat)} offset:{1024*qb + 16*hh}')
    for qb in range(3):
        n = lambda r: V(ST[qb] + 2*r); l = lambda r: V(ST[qb] + 2*r + 1)
        L += [f's_waitcnt lgkmcnt({4 - 2*qb})']
        L += [f'v_min3_f32 {V(22)}, {n(0)}, {n(1)}, {n(2)}', f'v_min_f32 {V(22)}, {V(22)}, {n(3)}']
        for r in range(4): L.append(f'v_sub_f32 {n(r)}, {V(22)}, {n(r)}')
        L.append(f'v_sub_f32 {V(16+2*qb)}, {V(22)}, {V(16+2*qb)}')
        for r in range(4): L.append(f'v_exp_f32 {n(r)}, {n(r)}')
        L += [f'v_exp_f32 {V(16+2*qb)}, {V(16+2*qb)}', f'v_mul_f32 {V(23)}, {n(0)}, {l(0)}']
        for r in range(1, 4): L.append(f'v_fma_f32 {V(23)}, {n(r)}, {l(r)}, {V(23)}')
        L += [f'v_rcp_f32 {V(23)}, {V(23)}', 's_nop 0', f'v_mul_f32 {V(16+2*qb)}, {V(16+2*qb)}, {V(23)}']
    L += rd(8)
    roff = {1: 0, 2: 0, 3: 24576}
    for k in range(9):
        r, qb = 1 + k // 3, k % 3; b = BL[k]
        for i in range(8): L.append(f'v_pk_mul_f32 {V(b+2*i,2)}, {V(b+2*i,2)}, {V(16+2*qb,2)} op_sel_hi:[1,0]')
        for i in range(8): L.append(f'v_cvt_pk_bf16_f32 {V(b+i)}, {V(b+2*i)}, {V(b+2*i+1)}')
        for u in range(2): L.append(f'ds_write_b128 {V(vAd+r)}, {V(b+4*u,4)} offset:{roff[r] + (qb*2+u)*1024}')
    L += ['s_waitcnt lgkmcnt(12)']
    for qb in range(3):
        b = 24 + 16*qb
        for i in range(16): L.append(f'v_accvgpr_read_b32 {V(b+i)}, {A(Oacc(0,qb)+i)}')
        for i in range(8): L.append(f'v_pk_mul_f32 {V(b+2*i,2)}, {V(b+2*i,2)}, {V(16+2*qb,2)} op_sel_hi:[1,0]')
    L += [f's_mul_i32 {S(sTmp)}, {S(sWv)}, 6144', f's_add_u32 {S(sTmp)}, {S(sTmp)}, {LDS_XR}', f'v_add_u32 {V(vAd)}, {S(sTmp)}, {V(vL16)}',
          f's_lshl_b32 {S(sTmp)}, {S(sWv)}, 15', f'v_add_u32 {V(vAd+1)}, {S(sTmp)}, {V(vL16)}']
    L += st2() + ['s_waitcnt lgkmcnt(0)', 's_barrier'] + st2(1)
    if OPT['pre'] > 2: L += [f's_cmp_eq_u32 {S(sT)}, 16', 's_cbranch_scc0 CP2'] + wd(2) + wd(3) + ['CP2:']
    rds = []; mfs = []
    for r in range(1, 4):
        for u in range(2):
            for qb in range(3):
                d = 72 + len(rds) * 4
                rds.append(f'ds_read_b128 {V(d,4)}, {V(vAd if r == 1 else vAd+1)} offset:{roff[r] + (qb*2+u)*1024}')
                mfs.append(f'{MF} {V(24+16*qb,16)}, {V(vI+4*u,4)}, {V(d,4)}, {V(24+16*qb,16)}')
    L += rds[:12]
    for k in range(18):
        if k < 6: L += [rds[12+k], 's_waitcnt lgkmcnt(12)']
        else: L += [f's_waitcnt lgkmcnt({17-k})']
        L.append(mfs[k])
    L += st2()
    L += [f's_cmp_eq_u32 {S(sT)}, 16', 's_cbranch_scc0 CB1', 's_nop 7', 's_nop 3', 's_branch CB2', 'CB1:']
    L += soff_calc(sSo, 1)
    for i in range(8):
        if i % 4 == 0: L += [f's_add_u32 m0, {S(sM0K)}, {24576 + 4096*(i>>2)}', 's_nop 0']
        L.append(f'buffer_load_dwordx4 {V(vOffV)}, {S(sV,4)}, {S(sSo + (i>>2))} offen offset:{1024*(i&3)}{KVF} lds')
    L += ['CB2:']
    for qb in range(3):
        for i in range(8): L.append(f'v_cvt_pk_bf16_f32 {V(vVf+8*qb+i)}, {V(24+16*qb+2*i)}, {V(24+16*qb+2*i+1)}')
        L.append(f's_add_u32 {S(sTmp)}, {S(sOb)}, {qb*262144}')
        for u in range(2):
            L.append(f'buffer_store_dwordx4 {V(vVf+8*qb+4*u,4)}, {V(vL16)}, {S(sO,4)}, {S(sTmp)} offen offset:{1024*u}{STF}')
    L += [f's_add_u32 {S(sOb)}, {S(sOb)}, {12*262144}', 's_nop 1'] + st2()
    return L

PART_OFF = 20 << 20
sFl2, sPs = 54, 55
def advW():
    return [f's_add_u32 {S(sTmp)}, {S(sNW)}, {S(sRt)}', f's_and_b32 {S(sTmp)}, {S(sTmp)}, 15',
            f's_mul_i32 {S(sWs)}, {S(sTmp)}, 81920', f's_add_u32 {S(sWs)}, {S(sWs)}, {S(sWs0)}', f's_add_u32 {S(sNW)}, {S(sNW)}, 1']
def advO():
    return [f's_add_u32 {S(sTmp)}, {S(sNO)}, {S(sRt)}', f's_and_b32 {S(sTmp)}, {S(sTmp)}, 15',
            f's_lshl_b32 {S(sTmp)}, {S(sTmp)}, 12', f's_add_u32 {S(sOsA)}, {S(sOs0)}, {S(sTmp)}', f's_add_u32 {S(sNO)}, {S(sNO)}, 1']
slot = lambda n: 32768 * (n & 3) + 8192
def wo_dma(n):
    G = [[f's_add_u32 m0, {S(sM)}, {slot(n) + 1024*i}', f's_add_u32 {S(sTmp)}, {S(sWs)}, {i*5120}',
          f'buffer_load_dwordx4 {V(vOffW2)}, {S(sW,4)}, {S(sTmp)} offen{K2F} lds'] for i in range(4)]
    G[0] = advW() + G[0]
    return G
wd = lambda n: sum(wo_dma(n), [])

def op_setup():
    mi, ni, kq, j = sOsA, sOsB, sG, sWs
    L = [f's_mov_b32 {S(sW)}, s48', f's_and_b32 {S(sW+1)}, s49, 0xffff', f's_mov_b32 {S(sW+2)}, 5242880',
         f's_mov_b32 {S(sX)}, s50', f's_and_b32 {S(sX+1)}, s51, 0xffff', f's_mov_b32 {S(sX+2)}, 1966080',
         f's_add_u32 {S(sTag)}, {S(sGen)}, 0x9e3779b1', f's_lshl_b32 {S(sM)}, {S(sWv)}, 12',
         f's_lshr_b32 {S(j)}, s2, 3', f's_mul_i32 {S(mi)}, {S(j)}, 52', f's_lshr_b32 {S(mi)}, {S(mi)}, 8',
         f's_mul_i32 {S(ni)}, {S(mi)}, 5', f's_sub_u32 {S(ni)}, {S(j)}, {S(ni)}', f's_and_b32 {S(kq)}, s2, 3',
         f's_mul_i32 {S(sRt)}, {S(mi)}, 86', f's_lshr_b32 {S(sRt)}, {S(sRt)}, 5', f's_mul_i32 {S(sTmp)}, {S(ni)}, 103', f's_lshr_b32 {S(sTmp)}, {S(sTmp)}, 5',
         f's_add_u32 {S(sRt)}, {S(sRt)}, {S(sTmp)}', f's_mov_b32 {S(sNW)}, 0', f's_mov_b32 {S(sNO)}, 0',
         f's_mul_i32 {S(sWs0)}, {S(kq)}, 1310720', f's_mul_i32 s3, {S(sWv)}, 20480', f's_add_u32 {S(sWs0)}, {S(sWs0)}, s3',
         f's_lshl_b32 s3, {S(ni)}, 8', f's_add_u32 {S(sWs0)}, {S(sWs0)}, s3',
         f's_lshl_b32 {S(mi)}, {S(mi)}, 2', f's_add_u32 {S(mi)}, {S(mi)}, {S(sWv)}',
         f's_mul_i32 {S(sOut)}, {S(mi)}, 81920', f's_add_u32 {S(sOut)}, {S(sOut)}, s3', f's_mul_i32 s3, {S(sBr)}, 1280', f's_add_u32 {S(sOut)}, {S(sOut)}, s3',
         f's_lshl_b32 s3, {S(kq)}, 6', f's_add_u32 {S(sOut)}, {S(sOut)}, s3',
         f's_lshl_b32 {S(sOs0)}, {S(mi)}, 18', f's_lshl_b32 s3, {S(kq)}, 16', f's_add_u32 {S(sOs0)}, {S(sOs0)}, s3',
         f's_lshl_b32 s3, {S(sBr)}, 12', f's_lshl_b32 {S(sTmp)}, {S(kq)}, 7', f's_add_u32 s3, s3, {S(sTmp)}',
         f's_lshl_b32 {S(sFlg)}, {S(sBp)}, 9', f's_add_u32 {S(sFlg)}, {S(sFlg)}, s3',
         f's_and_b32 {S(sTmp)}, {S(sH)}, 7', f's_lshl_b32 {S(sTmp)}, {S(sTmp)}, 2', f's_add_u32 {S(sFlg)}, {S(sFlg)}, {S(sTmp)}',
         f's_mul_i32 {S(sPoll)}, {S(mi)}, 43', f's_lshr_b32 {S(sPoll)}, {S(sPoll)}, 7', f's_lshl_b32 {S(sPoll)}, {S(sPoll)}, 9',
         f's_add_u32 {S(sPoll)}, {S(sPoll)}, s3',
         f's_lshl_b32 s3, {S(sBr)}, 5', f's_add_u32 s3, s3, {S(j)}', f's_lshl_b32 {S(sFl2)}, s3, 7', f's_lshl_b32 {S(sTmp)}, {S(kq)}, 2',
         f's_add_u32 {S(sFl2)}, {S(sFl2)}, {S(sTmp)}', f's_add_u32 {S(sFl2)}, {S(sFl2)}, 8192',
         f's_mul_i32 {S(sPs)}, s3, 196608', f's_add_u32 {S(sPs)}, {S(sPs)}, {S(sM)}',
         f'v_lshrrev_b32 v17, 8, {V(vL16)}', 'v_lshlrev_b32 v16, 6, v17', f'v_and_b32 v18, 0xf0, {V(vL16)}', 'v_xor_b32 v16, v16, v18',
         'v_mul_u32_u24 v17, 0x500, v17', f'v_add_u32 {V(vOffW2)}, v16, v17',
         f's_cmp_eq_u32 {S(sWv)}, 0', 's_cbranch_scc0 NOCLR',
         f'v_lshlrev_b32 v16, 7, {V(vL16)}', f'v_mov_b32 v17, {S(sGen)}', f'v_mov_b32 v18, {LDS_CNT}', 'v_mov_b32 v19, 0', 's_mov_b64 exec, 3',
         f'buffer_store_dword v17, v16, {S(sF,4)}, {S(sFlg)} offen sc1', f'buffer_store_dword v17, v19, {S(sF,4)}, {S(sFl2)} offen sc1',
         'ds_write_b32 v18, v19', 's_mov_b64 exec, -1', 's_nop 1', 'NOCLR:']
    return L

def publish(last, tag, so, t=16):
    return [f'v_mov_b32 {V(t)}, {LDS_CNT}', f'v_mov_b32 {V(t+1)}, 1', 's_mov_b64 exec, 1', f'ds_add_rtn_u32 {V(t+2)}, {V(t)}, {V(t+1)}',
            f'v_mov_b32 {V(t+3)}, {S(sTag)}', f'v_mov_b32 {V(t+4)}, 0', 's_waitcnt lgkmcnt(0)', f'v_cmp_eq_u32 vcc, {last}, {V(t+2)}',
            f's_cbranch_vccz {tag}', f'buffer_store_dword {V(t+3)}, {V(t+4)}, {S(sF,4)}, {S(so)} offen sc1', f'{tag}:', 's_mov_b64 exec, -1',
            f's_add_u32 {S(sFlg)}, {S(sFlg)}, 2048', 's_nop 0']

def delay(tag):
    if not OPT['dly']: return []
    return [f's_mov_b32 {S(sTmp2)}, {OPT["dly"]}', f'{tag}W:', 's_nop 15', f's_sub_u32 {S(sTmp2)}, {S(sTmp2)}, 1', f's_cbranch_scc0 {tag}W']
def poll(tag, pl, first=True):
    L = [f's_mov_b32 {S(sG)}, {SPIN}', f's_branch {tag}{"B" if first else "C"}', f'{tag}:'] + delay(tag)
    return L + [f'{tag}B:', pl, f's_sub_u32 {S(sG)}, {S(sG)}, 1', f's_cbranch_scc1 {tag}D', f'{tag}C:', 's_waitcnt vmcnt(0)',
                f'v_cmp_ne_u32 vcc, {S(sTag)}, v1', f's_cbranch_vccnz {tag}', f'{tag}D:']

def oproj():
    vRd, vPo, vOa, vP2, vOf, vWf = 2, 10, 11, 15, 24, 88
    pl = f'buffer_load_dword v1, {V(vPo)}, {S(sF,4)}, {S(sPoll)} offen sc1'
    L = [f'v_lshrrev_b32 v21, 4, {V(vL16)}', 'v_and_b32 v13, 7, v21', f'v_lshlrev_b32 {V(vPo)}, 2, v13', pl,
         'v_lshrrev_b32 v12, 5, v21', 'v_bfe_u32 v13, v21, 2, 2', 'v_lshlrev_b32 v14, 3, v12', 'v_add_u32 v14, v14, v13',
         'v_lshlrev_b32 v14, 8, v14', f's_and_b32 {S(sTmp)}, s2, 3', f'v_xor_b32 v13, {S(sTmp)}, v13',
         'v_lshlrev_b32 v13, 6, v13', 'v_add_u32 v14, v14, v13',
         'v_and_b32 v13, 16, v21', 'v_lshlrev_b32 v13, 1, v13', 'v_add_u32 v14, v14, v13',
         'v_and_b32 v13, 1, v21', 'v_lshlrev_b32 v13, 4, v13', 'v_add_u32 v14, v14, v13',
         'v_and_b32 v13, 2, v21', 'v_lshlrev_b32 v13, 2, v13', f'v_add_u32 {V(vRd)}, v14, v13']
    for a in range(1, 4): L.append(f'v_xor_b32 {V(vRd+a)}, {64*a}, {V(vRd)}')
    for a in range(4): L.append(f'v_add_u32 {V(vRd+4+a)}, 0x10000, {V(vRd+a)}')
    L += ['v_and_b32 v13, 31, v21', 'v_mul_u32_u24 v13, 0xa00, v13', 'v_lshlrev_b32 v12, 4, v12', f'v_add_u32 {V(vOa)}, v12, v13',
          'v_and_b32 v13, 3, v21', f'v_lshlrev_b32 {V(vP2)}, 2, v13',
          f's_add_u32 {S(sK)}, {S(sF)}, {PART_OFF - FLAG_OFF}', f's_addc_u32 {S(sK+1)}, {S(sF+1)}, 0', f's_mov_b32 {S(sK+2)}, {64*196608}']
    for i in range(64): L.append(f'v_accvgpr_write_b32 {A(i)}, 0')
    L += ['s_waitcnt vmcnt(1)'] + publish(7, 'PUB2', sFlg) + stamp()
    L += ['s_cmp_ge_u32 s2, 240', 's_cbranch_scc1 NOTILE']
    def wreads(n):
        return [f'ds_read_b64_tr_b16 {V(vWf + 64*(n&1) + (ks*4+a)*4 + 2*wp, 2)}, {V(vRd + 4*((n>>1)&1) + a)} offset:{slot(n&1) + 4096*ks + 1024*wp}'
                for ks in range(4) for a in (1, 2, 3, 0) for wp in range(2)]
    def oloads(n):
        G = [[f'buffer_load_dwordx4 {V(vOf + 16*(n&3) + 4*ks, 4)}, {V(vL16)}, {S(sO,4)}, {S(sOsA)} offen offset:{1024*ks} sc1'] for ks in range(4)]
        G[0] = advO() + G[0]
        return G
    ol = lambda n: sum(oloads(n), [])
    pre = OPT['pre']
    for n in range(pre, 2): L += wd(n)
    L += poll('POLL', pl, False)
    L += ol(0) + (wd(2) if pre < 3 else []) + ol(1) + (wd(3) if pre < 4 else []) + ol(2)
    L += [f's_waitcnt vmcnt({24 if pre < 3 else 4})', 's_barrier'] + wreads(0) + stamp()
    def body(n, w, o, wait):
        mf = [f'{MF} {A(a*16,16)}, {V(vWf+64*(n&1)+(ks*4+a)*4,4)}, {V(vOf+16*(n&3)+4*ks,4)}, {A(a*16,16)}' for ks in range(4) for a in (1, 2, 3, 0)]
        gaps = [[] for _ in range(16)]
        if n != 15: spread(gaps, wreads(n + 1), 0, OPT['wrend'])
        G = (wo_dma(n) if w else []) + (oloads(n + 3) if o else [])
        if G: spread_groups(gaps, G, 0, 15)
        return weave(mf, gaps, [f's_waitcnt vmcnt({wait}) lgkmcnt(0)'] + (['s_barrier'] if n != 15 else []))
    L += [f's_mov_b32 {S(sG)}, 0', 'OP_LOOP:']
    for b in range(4): L += body(b, True, True, 16)
    L += [f's_add_u32 {S(sG)}, {S(sG)}, 1', f's_cmp_lt_u32 {S(sG)}, 3', 's_cbranch_scc1 OP_LOOP']
    L += body(12, False, True, 16) + body(13, False, False, 12) + body(14, False, False, 4) + body(15, False, False, 0)
    L += stamp() + ['s_and_b32 s3, s2, 3']
    for a in range(1, 4):
        L += [f's_xor_b32 {S(sTmp)}, s3, {a}', f's_mul_i32 {S(sTmp)}, {S(sTmp)}, 49152', f's_add_u32 {S(sTmp)}, {S(sTmp)}, {S(sPs)}',
              f's_add_u32 {S(sTmp)}, {S(sTmp)}, {(a-1)*16384}']
        b = 88 + 16 * a
        for i in range(16): L.append(f'v_accvgpr_read_b32 {V(b+i)}, {A(a*16+i)}')
        for i in range(8): L.append(f'v_cvt_pk_bf16_f32 {V(b+i)}, {V(b+2*i)}, {V(b+2*i+1)}')
        for u in range(2): L.append(f'buffer_store_dwordx4 {V(b+4*u,4)}, {V(vL16)}, {S(sK,4)}, {S(sTmp)} offen offset:{1024*u} sc1')
    L += ['s_mul_i32 s3, s3, 49152', f's_add_u32 {S(sPs)}, {S(sPs)}, s3', f's_and_b32 {S(sPoll)}, {S(sFl2)}, 0xfff0']
    L += ['s_waitcnt vmcnt(0)'] + publish(11, 'PUB3', sFl2) + stamp()
    L += poll('POLM', f'buffer_load_dword v1, {V(vP2)}, {S(sF,4)}, {S(sPoll)} offen sc1') + stamp()
    for a in range(3):
        if a: L.append(f's_add_u32 {S(sPs)}, {S(sPs)}, 16384')
        for u in range(2): L.append(f'buffer_load_dwordx4 {V(40+8*a+4*u,4)}, {V(vL16)}, {S(sK,4)}, {S(sPs)} offen offset:{1024*u} sc1')
    for k in range(6):
        L += [f's_waitcnt vmcnt({5-k})', f'{MF} {A(0,16)}, {V(vI+4*(k&1),4)}, {V(40+4*k,4)}, {A(0,16)}']
    L += ['s_nop 7', 's_nop 3']
    for i in range(16): L.append(f'v_accvgpr_read_b32 {V(24+i)}, {A(i)}')
    for i in range(8): L.append(f'v_cvt_pk_bf16_f32 {V(88+i)}, {V(24+2*i)}, {V(25+2*i)}')
    for u in range(2): L.append(f'buffer_store_dwordx4 {V(88+4*u,4)}, {V(vOa)}, {S(sX,4)}, {S(sOut)} offen offset:{32*u}')
    L += ['s_branch K1_FIN', 'NOTILE:', 's_cmp_eq_u32 s2, 255', 's_cbranch_scc0 K1_FIN', f's_cmp_eq_u32 {S(sWv)}, 0', 's_cbranch_scc0 K1_FIN']
    L += [f's_mov_b32 {S(sG)}, {SPIN}', f'v_lshlrev_b32 v24, 3, {V(vL16)}', 'GPOLL:'] + delay('GD') + [f'buffer_load_dwordx4 v[16:19], v24, {S(sF,4)}, 0 offen sc1',
          f'buffer_load_dwordx4 v[20:23], v24, {S(sF,4)}, 0 offen offset:16 sc1', f's_sub_u32 {S(sG)}, {S(sG)}, 1',
          's_cbranch_scc1 GDONE', 's_waitcnt vmcnt(0)']
    for i in range(8): L.append(f'v_xor_b32 {V(16+i)}, {S(sTag)}, {V(16+i)}')
    L += ['v_or3_b32 v16, v16, v17, v18', 'v_or3_b32 v19, v19, v20, v21', 'v_or3_b32 v16, v16, v22, v23', 'v_or_b32 v16, v16, v19',
          'v_cmp_ne_u32 vcc, 0, v16', 's_cbranch_vccnz GPOLL', 'GDONE:', 's_waitcnt vmcnt(0)', f'v_mov_b32 v17, {S(sTag)}', 'v_mov_b32 v16, 16384', 's_mov_b64 exec, 1',
          f'buffer_store_dword v17, v16, {S(sF,4)}, 0 offen sc1', 's_mov_b64 exec, -1', 's_branch K1_FIN']
    return L

def k1():
    L = k1_prologue()
    L += k1_qproj()
    L += stamp()
    L += pre_tile() + op_setup() + ident_init() + tile(True)
    L += ['LOOP:'] + tile(False)
    L += [f's_cmp_eq_u32 {S(sT)}, 14', 's_cbranch_scc1 PEEL', f's_cmp_lg_u32 {S(sT)}, 8', 's_cbranch_scc1 LOOP', 's_nop 7', 's_nop 7']
    L += stamp()
    L += combine()
    L += [f's_cmp_eq_u32 {S(sT)}, 16', 's_cbranch_scc1 OPROJ']
    L += stamp()
    L += tile(True) + ['s_waitcnt vmcnt(16)'] + publish(3, 'PUB1', sFlg)
    L += ['s_branch LOOP']
    L += ['PEEL:'] + tile(False, 14) + tile(False, 15) + stamp() + ['s_nop 7', 's_nop 7', 's_branch COMBINE']
    L += ['OPROJ:'] + oproj()
    for tg in ('', '_14', '_15'):
        for qb in range(3): L += slow_path(qb, tg)
    L += ['K1_FIN:'] + stamp_dump(0, sWv, sTmp)
    L += ['K1_END:', 's_endpgm']
    return L

def emit(kname, L, nv, acc):
    out = [f'.globl {kname}', '.p2align 8', f'.type {kname},@function', f'{kname}:']
    for t in L: out.append(t if is_label(t) else '    ' + t)
    desc = ['.p2align 6', f'.amdhsa_kernel {kname}', f'  .amdhsa_next_free_vgpr {nv}', '  .amdhsa_next_free_sgpr 102',
            f'  .amdhsa_accum_offset {acc}', '  .amdhsa_group_segment_fixed_size 0', '  .amdhsa_kernarg_size 104',
            '  .amdhsa_user_sgpr_count 2', '  .amdhsa_user_sgpr_kernarg_segment_ptr 1', '  .amdhsa_system_sgpr_workgroup_id_x 1',
            '.end_amdhsa_kernel']
    return out, desc

def main():
    a = k1()
    bad = check_seq(code_only(a), 'k1')
    k1n = NAME + '_kernel'
    hdr = ['; @launch grid=(256,1,1) block=(256,1,1) lds=163840', '.amdgcn_target "amdgcn-amd-amdhsa--gfx950"', '.text']
    c1, d1 = emit(k1n, a, 512, 256)
    txt = '\n'.join(hdr + c1 + ['.section .rodata,"a"'] + d1) + '\n'
    open(sys.argv[1], 'w').write(txt)
    print('hazards', bad, 'lines', len(a), 'stamps', stamp_n[0])
main()
```

```python
import sys, struct, math
sys.path.insert(0, 'gen')
from asmlib import *

NAME = 'concat_heads__gqa_block_cached__mha_block_cached__near_ridge'
def f32(x): return '0x%08x' % struct.unpack('<I', struct.pack('<f', x))[0]
CSCALE = f32(128 ** -0.5 * math.log2(math.e))

OPT = dict(grp=0, ordA='first', ordB='late', outflag='', dly=8, wrend=11, pre=2, oflag='', k2diag=0, k2rot=8, kvflag='nt', early=8, per=4, stamps=0, rot=0, half=0, qrot=1, nA=2, wxflag='', k2flag='', stflag='sc1')
OPT.update(kpos=[1,4,7,10,13,16,19,22], vpos=[24,27,30,33,36,39,42,45], sm=[(10,19),(20,29),(30,39)], kw=40)
for a in sys.argv[2:]:
    k, v = a.split('=')
    OPT[k] = eval(v) if v[0] in '[(' else (v if not v.lstrip('-').isdigit() else int(v))
fl = lambda k: (' ' + OPT[k].replace('+', ' ')) if OPT[k] else ''
KVF, WXF, K2F, STF = fl('kvflag'), fl('wxflag'), fl('k2flag'), fl('stflag')

def R(f, a, n=1):
    return f'{f}{a}' if n == 1 else f'{f}[{a}:{a+n-1}]'
V = lambda a, n=1: R('v', a, n)
A = lambda a, n=1: R('a', a, n)
S = lambda a, n=1: R('s', a, n)
MF = 'v_mfma_f32_32x32x16_bf16'

sK, sV, sW, sX, sO = 4, 8, 12, 16, 20
sWv, sBr, sH, sBp, sT, sSo, sSo2, sM0K, sW8, sTmp, sTmp2 = 24, 25, 26, 27, 28, 29, 30, 31, 32, 33, 34
sWb, sXb, sWm, sXm, sThr, sOb, sQw, sRot = 35, 36, 37, 38, 39, 56, 57, 58
sCh, sCw, sCx = 44, 45, 46
sDbg = 60
sSt = 64
vL16, vKb, vVb, vOffK, vOffV = 0, 1, 2, 3, 7
vL, vTs, vAd, vE, vP, vS, vN, vKf, vVf, vQ2 = 8, 11, 12, 16, 24, 48, 96, 144, 176, 208
vOffW, vOffX, vWA, vXA = 240, 241, 243, 247
vStat = 255
def Qreg(qb, s):
    return A(192 + qb * 32 + 4 * s, 4) if qb < 2 else V(vQ2 + 4 * s, 4)
def Oacc(a, qb): return (a * 3 + qb) * 16
LDS_Q1, LDS_Q2, LDS_STAT, LDS_XR = 81920, 131072, 155648, 131072
SB = [0, 40960, 81920, 122880]
LDS_DUMMY = 158720
LDS_CNT = 163328
FLAG_OFF = 12582912
sF = 92
sRt, sNW, sNO, sWs0, sOs0, sWs, sOsA, sOsB, sOut, sFlg, sPoll, sG, sTag, sGen, sM = 35, 36, 37, 38, 40, 41, 42, 43, 44, 45, 46, 47, 52, 53, 57
vOffW2 = 248
SPIN = 30000

stamp_n = [0]
def stamp():
    if not OPT['stamps']: return []
    i = stamp_n[0]; stamp_n[0] += 1
    return [f's_memrealtime {S(sSt + 2 * i, 2)}']

def st2(w=0):
    if OPT['stamps'] != 2: return []
    return stamp() + (['s_waitcnt lgkmcnt(0)'] if w else [])
def stamp_init(koff):
    if not OPT['stamps']: return []
    stamp_n[0] = 0
    return [f's_load_dwordx2 {S(sDbg,2)}, s[0:1], 96', 's_memtime s[96:97]'] + stamp()
def stamp_dump(koff, swv, stmp):
    if not OPT['stamps']: return []
    L = ['s_waitcnt vmcnt(0)'] + stamp() + ['s_memtime s[98:99]', 's_waitcnt lgkmcnt(0)']
    L += [f's_add_u32 {S(sDbg)}, {S(sDbg)}, {(16<<20) + koff}', f's_addc_u32 {S(sDbg+1)}, {S(sDbg+1)}, 0',
          f's_and_b32 {S(sDbg+1)}, {S(sDbg+1)}, 0xffff', f's_mov_b32 {S(sDbg+2)}, 65536', f's_mov_b32 {S(sDbg+3)}, 0x20000',
          f's_lshl_b32 {S(stmp)}, s2, 2', f's_add_u32 {S(stmp)}, {S(stmp)}, {S(swv)}', f's_lshl_b32 {S(stmp)}, {S(stmp)}, 6', 'v_mov_b32 v1, 0']
    for i in range(stamp_n[0]):
        L += [f'v_mov_b32 v2, {S(sSt+2*i)}', f'buffer_store_dword v2, v1, {S(sDbg,4)}, {S(stmp)} offen offset:{4*i}']
    L += ['s_sub_u32 s98, s98, s96', 'v_mov_b32 v2, s98', f'buffer_store_dword v2, v1, {S(sDbg,4)}, {S(stmp)} offen offset:60']
    L += ['s_getreg_b32 s98, hwreg(HW_REG_XCC_ID)', 'v_mov_b32 v2, s98', f'buffer_store_dword v2, v1, {S(sDbg,4)}, {S(stmp)} offen offset:56']
    return L

def k1_prologue():
    L = [
        f's_cmp_ge_u32 s2, {128 if OPT["half"] else 256}', 's_cbranch_scc1 K1_END',
        's_load_dwordx8 s[40:47], s[0:1], 0', 's_load_dwordx8 s[48:55], s[0:1], 40',
        f's_load_dwordx2 {S(sO,2)}, s[0:1], 96',
    ]
    L += stamp_init(0)
    L += [
        's_and_b32 s3, s2, 7', f's_lshr_b32 {S(sTmp)}, s2, 3', f's_lshr_b32 {S(sBr)}, s3, 2',
        's_and_b32 s3, s3, 3', 's_lshl_b32 s3, s3, 3', f's_and_b32 {S(sH)}, {S(sTmp)}, 7',
        f's_add_u32 {S(sH)}, {S(sH)}, s3', f's_lshr_b32 {S(sBp)}, {S(sTmp)}, 3',
        'v_lshrrev_b32 v20, 6, v0', 'v_and_b32 v21, 63, v0', 's_nop 0',
        f'v_readfirstlane_b32 {S(sWv)}, v20',
        'v_lshlrev_b32 v0, 4, v21',
        'v_lshrrev_b32 v22, 4, v21',
        'v_and_b32 v23, 15, v21',
        'v_xor_b32 v24, v23, v22', 'v_lshlrev_b32 v24, 4, v24', 'v_lshlrev_b32 v25, 8, v22',
        f'v_add_u32 {V(vOffK)}, v24, v25',
        f'v_xor_b32 {V(vOffK+1)}, 64, {V(vOffK)}', f'v_xor_b32 {V(vOffK+2)}, 0x80, {V(vOffK)}',
        f'v_xor_b32 {V(vOffK+3)}, 0xc0, {V(vOffK)}',
        'v_lshlrev_b32 v24, 2, v22', 'v_xor_b32 v24, v23, v24', 'v_lshlrev_b32 v24, 4, v24',
        f'v_add_u32 {V(vOffV)}, v24, v25', 'v_lshlrev_b32 v25, 13, v22', f'v_add_u32 {V(vOffW)}, v24, v25',
        'v_and_b32 v24, 7, v21', 'v_xor_b32 v24, v24, v22', 'v_lshlrev_b32 v24, 4, v24',
        'v_lshrrev_b32 v25, 3, v21', 'v_mul_u32_u24 v25, 0x500, v25', f'v_add_u32 {V(vOffX)}, v24, v25',
        f'v_xor_b32 {V(vOffX+1)}, 64, {V(vOffX)}',
        f's_lshl_b32 {S(sW8)}, {S(sWv)}, 13', f's_lshl_b32 {S(sM0K)}, {S(sWv)}, 15',
        f's_lshl_b32 {S(sWb)}, {S(sWv)}, 17', f's_lshl_b32 {S(sWm)}, {S(sWv)}, 12',
        f's_mul_i32 {S(sXm)}, {S(sWv)}, 6144', f's_add_u32 {S(sXm)}, {S(sXm)}, 16384',
        f's_lshr_b32 {S(sTmp)}, {S(sWv)}, 1', f's_mul_i32 {S(sXb)}, {S(sTmp)}, 491520',
        f's_and_b32 {S(sTmp2)}, {S(sWv)}, 1', f's_mul_i32 s3, {S(sTmp2)}, 61440', f's_add_u32 {S(sXb)}, {S(sXb)}, s3',
        f's_mov_b32 {S(sThr)}, {f32(256.0)}',
        f's_mul_i32 {S(sQw)}, {S(sTmp)}, {LDS_Q2 - LDS_Q1}', f's_lshl_b32 s3, {S(sTmp2)}, 12',
        f's_add_u32 {S(sQw)}, {S(sQw)}, s3', f's_add_u32 {S(sQw)}, {S(sQw)}, {LDS_Q1}',
        'v_lshrrev_b32 v26, 5, v21', 'v_and_b32 v27, 31, v21', 'v_bfe_u32 v28, v21, 2, 2',
        'v_and_b32 v29, 16, v21', 'v_lshlrev_b32 v29, 1, v29',
        'v_and_b32 v30, 1, v21', 'v_lshlrev_b32 v30, 4, v30', 'v_add_u32 v29, v29, v30',
        'v_and_b32 v30, 2, v21', 'v_lshlrev_b32 v30, 2, v30', 'v_add_u32 v29, v29, v30',
        'v_xor_b32 v30, v26, v23', 'v_lshlrev_b32 v30, 4, v30', 'v_lshlrev_b32 v31, 8, v27',
        'v_add_u32 v30, v30, v31', f'v_add_u32 {V(vKb)}, {S(sM0K)}, v30',
        'v_lshlrev_b32 v30, 2, v26', 'v_add_u32 v30, v30, v28', 'v_lshlrev_b32 v30, 8, v30',
        f'v_xor_b32 v31, {S(sWv)}, v28', 'v_lshlrev_b32 v31, 6, v31', 'v_add3_u32 v30, v30, v31, v29',
        f'v_add_u32 v30, {S(sM0K)}, v30', f'v_add_u32 {V(vVb)}, 0x2000, v30',
        'v_lshlrev_b32 v30, 3, v26', 'v_add_u32 v30, v30, v28', 'v_lshlrev_b32 v30, 8, v30',
        f's_lshl_b32 s3, {S(sTmp2)}, 1', 'v_xor_b32 v31, s3, v28', 'v_lshlrev_b32 v31, 6, v31',
        f'v_add3_u32 {V(vWA)}, v30, v31, v29', f'v_xor_b32 {V(vWA+1)}, 64, {V(vWA)}',
        f'v_add_u32 {V(vWA+2)}, {SB[2]}, {V(vWA)}', f'v_add_u32 {V(vWA+3)}, {SB[2]}, {V(vWA+1)}',
        f's_mul_i32 s3, {S(sTmp)}, 12288', 's_add_u32 s3, s3, 16384',
        'v_bfe_u32 v30, v21, 1, 3', 'v_xor_b32 v30, v30, v26', 'v_lshlrev_b32 v30, 4, v30',
        'v_lshlrev_b32 v31, 7, v27', f'v_add3_u32 {V(vXA)}, v30, v31, s3',
    ]
    for ks in range(1, 4):
        L += [f'v_xor_b32 {V(vXA+ks)}, {32*ks}, {V(vXA)}']
    for ks in range(4):
        L += [f'v_add_u32 {V(vXA+4+ks)}, {SB[2]}, {V(vXA+ks)}']
    L += [f'v_lshlrev_b32 {V(vStat)}, 5, v27', f'v_add_u32 {V(vStat)}, {LDS_STAT}, {V(vStat)}']
    L += [
        's_waitcnt lgkmcnt(0)',
        f's_cmp_eq_u32 {S(sBr)}, 0',
        's_cselect_b64 s[40:41], s[40:41], s[48:49]', 's_cselect_b64 s[42:43], s[42:43], s[50:51]',
        's_cselect_b64 s[44:45], s[44:45], s[52:53]', 's_cselect_b64 s[46:47], s[46:47], s[54:55]',
        f's_lshl_b32 s3, {S(sBp)}, 5', f's_add_u32 s3, s3, {S(sH)}', 's_lshl_b32 s3, s3, 18',
        f's_add_u32 {S(sK)}, s42, s3', f's_addc_u32 {S(sK+1)}, s43, 0', f's_and_b32 {S(sK+1)}, {S(sK+1)}, 0xffff',
        f's_sub_u32 {S(sK+2)}, 0x4000000, s3', f's_mov_b32 {S(sK+3)}, 0x20000',
        f's_add_u32 {S(sV)}, s44, s3', f's_addc_u32 {S(sV+1)}, s45, 0', f's_and_b32 {S(sV+1)}, {S(sV+1)}, 0xffff',
        f's_sub_u32 {S(sV+2)}, 0x4000000, s3', f's_mov_b32 {S(sV+3)}, 0x20000',
        f's_lshl_b32 s3, {S(sH)}, 8',
        f's_add_u32 {S(sW)}, s46, s3', f's_addc_u32 {S(sW+1)}, s47, 0', f's_and_b32 {S(sW+1)}, {S(sW+1)}, 0xffff',
        f's_sub_u32 {S(sW+2)}, 5242880, s3', f's_mov_b32 {S(sW+3)}, 0x20000',
        f's_mul_i32 s3, {S(sBp)}, 122880',
        f's_add_u32 {S(sX)}, s40, s3', f's_addc_u32 {S(sX+1)}, s41, 0', f's_and_b32 {S(sX+1)}, {S(sX+1)}, 0xffff',
        f's_sub_u32 {S(sX+2)}, 983040, s3', f's_mov_b32 {S(sX+3)}, 0x20000',
        f's_mul_i32 s3, {S(sBr)}, 40', 's_add_u32 s3, s3, 32', 's_load_dwordx2 s[48:49], s[0:1], s3', 's_load_dwordx2 s[50:51], s[0:1], 80',
        f's_add_u32 {S(sF)}, {S(sO)}, {FLAG_OFF}', f's_addc_u32 {S(sF+1)}, {S(sO+1)}, 0', f's_load_dword {S(sGen)}, {S(sF,2)}, 16384',
        f's_and_b32 {S(sF+1)}, {S(sF+1)}, 0xffff', f's_mov_b32 {S(sF+2)}, 16512', f's_mov_b32 {S(sF+3)}, 0x20000',
        f's_mul_i32 s3, {S(sBr)}, 6291456',
        f's_add_u32 {S(sO)}, {S(sO)}, s3', f's_addc_u32 {S(sO+1)}, {S(sO+1)}, 0', f's_and_b32 {S(sO+1)}, {S(sO+1)}, 0xffff',
        f's_mov_b32 {S(sO+2)}, 6291456', f's_mov_b32 {S(sO+3)}, 0x20000',
        f's_mul_i32 {S(sOb)}, {S(sBp)}, 768', f's_lshl_b32 s3, {S(sH)}, 3', f's_add_u32 {S(sOb)}, {S(sOb)}, s3',
        f's_lshl_b32 s3, {S(sWv)}, 1', f's_add_u32 {S(sOb)}, {S(sOb)}, s3', f's_lshl_b32 {S(sOb)}, {S(sOb)}, 10',
        f's_mov_b32 {S(sT)}, 0',
    ]
    if OPT['rot']:
        L += [f's_lshr_b32 {S(sRot)}, s2, 3', f's_and_b32 {S(sRot)}, {S(sRot)}, 7']
    else:
        L += [f's_mov_b32 {S(sRot)}, 0']
    return L

def stage_dma(j):
    sb = SB[j % 4]; G = []
    for i in range(4):
        G.append([f's_add_u32 m0, {S(sWm)}, {sb + 1024*i}', f's_add_u32 {S(sTmp)}, {S(sCw)}, {i*32768}',
                  f'buffer_load_dwordx4 {V(vOffW)}, {S(sW,4)}, {S(sTmp)} offen{WXF} lds'])
    for i in range(6):
        G.append([f's_add_u32 m0, {S(sXm)}, {sb + 1024*i}', f's_add_u32 {S(sTmp)}, {S(sCx)}, {i*10240}',
                  f'buffer_load_dwordx4 {V(vOffX + (i&1))}, {S(sX,4)}, {S(sTmp)} offen{WXF} lds'])
    G[-1] += [f's_add_u32 {S(sCh)}, {S(sCh)}, 1', f's_cmp_eq_u32 {S(sCh)}, 10', f's_cselect_b32 {S(sCh)}, 0, {S(sCh)}',
              f's_lshl_b32 {S(sCw)}, {S(sCh)}, 19', f's_add_u32 {S(sCw)}, {S(sCw)}, {S(sWb)}',
              f's_lshl_b32 {S(sCx)}, {S(sCh)}, 7', f's_add_u32 {S(sCx)}, {S(sCx)}, {S(sXb)}']
    return G

def soff_calc(dst, tadd):
    return [f's_add_u32 {S(sTmp)}, {S(sT)}, {tadd}', f's_lshr_b32 {S(sTmp2)}, {S(sTmp)}, 3', f's_lshl_b32 {S(sTmp2)}, {S(sTmp2)}, 25',
            f's_add_u32 {S(sTmp)}, {S(sTmp)}, {S(sRot)}',
            f's_and_b32 {S(sTmp)}, {S(sTmp)}, 7', f's_lshl_b32 {S(sTmp)}, {S(sTmp)}, 15', f's_add_u32 {S(dst)}, {S(sTmp)}, {S(sTmp2)}',
            f's_add_u32 {S(dst)}, {S(dst)}, {S(sW8)}', f's_add_u32 {S(dst+1)}, {S(dst)}, 4096']

def kv_pre(n):
    p, i = n >> 3, n & 7
    so = 40 + 2 * (p >> 1) + (i >> 2)
    voff = vOffK + (i & 3) if p % 2 == 0 else vOffV
    srd = sK if p % 2 == 0 else sV
    return [f'buffer_load_dwordx4 {A(32*p + 4*i, 4)}, {V(voff)}, {S(srd,4)}, {S(so)} offen offset:{1024*(i&3)}{KVF}']

def spread_groups(gaps, groups, g0, g1):
    n = g1 - g0 + 1
    for k, g in enumerate(groups):
        gaps[g0 + (k * n) // len(groups)].extend(g)

lab_n = [0]
def lab(p='L'):
    lab_n[0] += 1
    return f'{p}{lab_n[0]}'

def qstages(order, first):
    Wf = lambda ks, d: 144 + ks * 8 + d * 4
    Xf = lambda ks, qb: 176 + ks * 12 + qb * 4
    def reads(j, ks):
        b = j % 4; hi = b >> 1; off = (b & 1) * 40960
        r = [f'ds_read_b64_tr_b16 {V(Wf(ks,d) + 2*wp, 2)}, {V(vWA + 2*hi + d)} offset:{off + 4096*ks + 1024*wp}' for d in range(2) for wp in range(2)]
        return r + [f'ds_read_b128 {V(Xf(ks,qb), 4)}, {V(vXA + 4*hi + ks)} offset:{off + 4096*qb}' for qb in range(3)]
    D = lambda m: [(m, g) for g in stage_dma(m)]
    KV = [(-1, kv_pre(n)) for n in range(32)]
    H = [[] for _ in range(20)]
    pro = D(0) + D(1)
    if order == 'mid':
        H[0], H[1] = D(2), D(3)
        for k in range(4): H[2 + k] = KV[8*k:8*k+8]
        for m in range(4, 10): H[m + 2] = D(m)
    else:
        H[0], H[1] = D(2), D(3)
        for m in range(4, 10): H[2*m-6], H[2*m-5] = D(m)[:5], D(m)[5:]
        if order == 'first': pro = KV + pro
        else:
            for k in range(6): H[14 + k] = KV[(32*k)//6:(32*(k+1))//6]
    seq = []
    def wait(m):
        last = max(i for i, t in enumerate(seq) if t == m)
        return min(63, len(seq) - 1 - last)
    L = []
    for t, g in pro: L += g; seq.append(t)
    sn = stamp_n[0]
    L += [f's_waitcnt vmcnt({wait(0)}) lgkmcnt(0)', 's_barrier']
    if OPT['stamps'] == 1: L += stamp() + ['s_waitcnt lgkmcnt(0)']
    L += reads(0, 0) + reads(0, 1)
    for j in range(10):
        mf = []; gaps = [[] for _ in range(24)]
        for ks in range(4):
            for d in range(2):
                for qb in range(3):
                    acc = V(48 + (d * 3 + qb) * 16, 16)
                    c = '0' if (j == 0 and ks == 0) else acc
                    mf.append(f'{MF} {acc}, {V(Wf(ks,d),4)}, {V(Xf(ks,qb),4)}, {c}')
        spread(gaps, reads(j, 2), 0, 3); spread(gaps, reads(j, 3), 4, 7)
        gaps[3].append('s_waitcnt lgkmcnt(7)')
        if H[2*j]: spread_groups(gaps, [g for t, g in H[2*j]], 0, 10)
        seq += [t for t, g in H[2*j]]
        gaps[11] += [f's_waitcnt vmcnt({wait(j+1)}) lgkmcnt(0)' if j < 9 else 's_waitcnt lgkmcnt(0)', 's_barrier']
        if j == 9 and OPT['stamps'] == 1: gaps[11] += stamp()
        if j < 9: spread(gaps, reads(j + 1, 0) + reads(j + 1, 1), 12, 19)
        if H[2*j+1]: spread_groups(gaps, [g for t, g in H[2*j+1]], 12, 22)
        seq += [t for t, g in H[2*j+1]]
        L += weave(mf, gaps, ['s_waitcnt lgkmcnt(7)'])
    if first: stamp_n[0] = sn
    return L

def k1_qproj():
    L = []
    L += soff_calc(40, 0) + soff_calc(42, 1)
    if OPT['qrot']:
        L += [f's_mul_i32 {S(sCh)}, {S(sBp)}, 5', f's_add_u32 {S(sCh)}, {S(sCh)}, 1', f's_lshr_b32 {S(sCh)}, {S(sCh)}, 1',
              f's_and_b32 {S(sTmp)}, {S(sH)}, 7', f's_add_u32 {S(sCh)}, {S(sCh)}, {S(sTmp)}',
              f's_sub_u32 {S(sTmp)}, {S(sCh)}, 10', f's_cmp_ge_u32 {S(sCh)}, 10', f's_cselect_b32 {S(sCh)}, {S(sTmp)}, {S(sCh)}']
    else:
        L += [f's_mov_b32 {S(sCh)}, 0']
    L += [f's_lshl_b32 {S(sCw)}, {S(sCh)}, 19', f's_add_u32 {S(sCw)}, {S(sCw)}, {S(sWb)}',
          f's_lshl_b32 {S(sCx)}, {S(sCh)}, 7', f's_add_u32 {S(sCx)}, {S(sCx)}, {S(sXb)}']
    if OPT['grp'] == 0: L += [f's_cmp_lt_u32 {S(sBp)}, {OPT["nA"]}']
    else: L += [f's_add_u32 {S(sTmp)}, {S(sBp)}, {S(sH)}', f's_bitcmp0_b32 {S(sTmp)}, 0']
    L += ['s_cbranch_scc1 QA'] + qstages(OPT['ordB'], 1) + ['s_branch QEND', 'QA:'] + qstages(OPT['ordA'], 0) + ['QEND:']
    L += [f'v_mov_b32 v16, {CSCALE}', f'v_mov_b32 v17, {CSCALE}', f'v_add_u32 {V(vAd)}, {S(sQw)}, {V(vL16)}']
    for d in range(2):
        for qb in range(3):
            a0 = 48 + (d * 3 + qb) * 16
            for i in range(8): L.append(f'v_pk_mul_f32 {V(a0+2*i,2)}, {V(a0+2*i,2)}, {V(16,2)}')
            t0 = 144 + (d * 3 + qb) * 8
            for i in range(8): L.append(f'v_cvt_pk_bf16_f32 {V(t0+i)}, {V(a0+2*i)}, {V(a0+2*i+1)}')
            for u in range(2):
                L.append(f'ds_write_b128 {V(vAd)}, {V(t0+4*u,4)} offset:{(qb*8 + 2*d + u)*1024}')
    L += ['s_waitcnt lgkmcnt(0)', 's_barrier']
    L += read_q(LDS_Q1)
    L += ['s_waitcnt lgkmcnt(0)', 's_barrier']
    return L

def read_q(base):
    L = [f'v_add_u32 {V(vAd)}, {base}, {V(vL16)}']
    for qb in range(3):
        for s in range(8):
            L.append(f'ds_read_b128 {Qreg(qb,s)}, {V(vAd)} offset:{(qb*8+s)*1024}')
    return L

def flush(p):
    return [f'ds_write_b128 {V(vAd+3)}, {A(32*p + 4*i, 4)} offset:{8192*p + 1024*i}' for i in range(8)]

def dma_groups(isV):
    G = []
    srd = sV if isV else sK
    for i in range(8):
        g = []
        if i % 4 == 0 and not isV:
            g += [f's_add_u32 m0, {S(sM0K)}, {4096*(i>>2)}', 's_nop 0']
        if i % 4 == 0 and isV:
            g += [f's_add_u32 {S(sTmp)}, {S(sM0K)}, {8192 + 4096*(i>>2)}', f's_and_b32 {S(sTmp2)}, {S(sT)}, 7', f's_cmp_eq_u32 {S(sTmp2)}, 7',
                  f's_cselect_b32 m0, {LDS_DUMMY}, {S(sTmp)}', f's_cselect_b32 {S(sSo + (i>>2))}, 0x7fff0000, {S(sSo + (i>>2))}']
        voff = vOffV if isV else vOffK + (i & 3)
        g.append(f'buffer_load_dwordx4 {V(voff)}, {S(srd,4)}, {S(sSo + (i>>2))} offen offset:{1024*(i&3)}{KVF} lds')
        G.append(g)
    return G

def exp_block(qb):
    s0 = vS + 16 * qb; p0 = vP + 8 * qb
    L = []
    for i in range(16 + 2):
        if i < 16: L.append(f'v_exp_f32 {V(vE + (i & 7))}, {V(s0 + i)}')
        j = i - 2
        if j >= 0:
            e = V(vE + (j & 7))
            if j == 1: L.append(f'v_add_f32 {V(vTs)}, {V(vE)}, {e}')
            elif j > 1: L.append(f'v_add_f32 {V(vTs)}, {V(vTs)}, {e}')
            if j & 1: L.append(f'v_cvt_pk_bf16_f32 {V(p0 + (j >> 1))}, {V(vE + ((j-1) & 7))}, {e}')
    return L

def max_block(qb, m, t):
    s0 = vS + 16 * qb
    L = [f'v_max3_f32 {V(m)}, {V(s0)}, {V(s0+1)}, {V(s0+2)}', f'v_max3_f32 {V(t)}, {V(s0+3)}, {V(s0+4)}, {V(s0+5)}']
    for k in range(6, 14, 4):
        L += [f'v_max3_f32 {V(m)}, {V(m)}, {V(s0+k)}, {V(s0+k+1)}', f'v_max3_f32 {V(t)}, {V(t)}, {V(s0+k+2)}, {V(s0+k+3)}']
    L += [f'v_max3_f32 {V(m)}, {V(m)}, {V(s0+14)}, {V(s0+15)}', f'v_max_f32 {V(m)}, {V(m)}, {V(t)}', f'v_mov_b32 {V(t)}, {V(m)}',
          's_nop 1', f'v_permlane32_swap_b32 {V(m)}, {V(t)}', 's_nop 0', f'v_max_f32 {V(m)}, {V(m)}, {V(t)}']
    return L

def sm_stream(qb, first, tag):
    s0 = vS + 16 * qb; n0 = vN + 16 * qb
    if first:
        m, t = vE, vE + 1
        L = max_block(qb, m, t)
        for i in range(16): L.append(f'v_sub_f32 {V(s0+i)}, {V(s0+i)}, {V(m)}')
        for i in range(16): L.append(f'v_sub_f32 {V(n0+i)}, 0, {V(m)}')
        L += exp_block(qb)
        L.append(f'v_mov_b32 {V(vL+qb)}, {V(vTs)}')
        return L
    L = exp_block(qb)
    L += [f'v_cmp_lt_f32 vcc, {S(sThr)}, {V(vTs)}', f's_cbranch_vccnz SLOW{qb}{tag}', f'BACK{qb}{tag}:',
          f'v_add_f32 {V(vL+qb)}, {V(vL+qb)}, {V(vTs)}']
    return L

def slow_path(qb, tag=''):
    s0 = vS + 16 * qb; n0 = vN + 16 * qb
    m, t, sc = vE, vE + 1, vE + 2
    L = [f'SLOW{qb}{tag}:', 's_nop 7', 's_nop 7']
    L += max_block(qb, m, t)
    L += [f'v_max_f32 {V(m)}, 0, {V(m)}', f'v_exp_f32 {V(sc)}, -{V(m)}', f'v_sub_f32 {V(t)}, {V(n0)}, {V(m)}']
    for i in range(16): L.append(f'v_mov_b32 {V(n0+i)}, {V(t)}')
    for i in range(16): L.append(f'v_sub_f32 {V(s0+i)}, {V(s0+i)}, {V(m)}')
    L.append(f'v_mul_f32 {V(vL+qb)}, {V(vL+qb)}, {V(sc)}')
    for a in range(4):
        for i in range(0, 16, 4):
            o = Oacc(a, qb) + i
            for k in range(4): L.append(f'v_accvgpr_read_b32 {V(vE+4+k)}, {A(o+k)}')
            for k in range(4): L.append(f'v_mul_f32 {V(vE+4+k)}, {V(vE+4+k)}, {V(sc)}')
            for k in range(4): L.append(f'v_accvgpr_write_b32 {A(o+k)}, {V(vE+4+k)}')
    L += exp_block(qb)
    L += ['s_nop 3', f's_branch BACK{qb}{tag}']
    return L

def k_reads():
    L = []
    for s in range(8):
        if s == 0: L.append(f'ds_read_b128 {V(vKf,4)}, {V(vKb)}')
        else:
            L += [f'v_xor_b32 {V(vAd + (s&1))}, {32*s}, {V(vKb)}', f'ds_read_b128 {V(vKf+4*s,4)}, {V(vAd + (s&1))}']
    L.append(f'v_xor_b32 {V(vKb)}, 0x4000, {V(vKb)}')
    return L

def v_reads():
    L = []
    for a in range(4):
        if a: L.append(f'v_xor_b32 {V(vAd + (a&1))}, {64*a}, {V(vVb)}')
        for u in range(2):
            for wp in range(2):
                ad = V(vVb) if a == 0 else V(vAd + (a&1))
                L.append(f'ds_read_b64_tr_b16 {V(vVf + (a*2+u)*4 + 2*wp, 2)}, {ad} offset:{4096*u + 2048*wp}')
    L.append(f'v_xor_b32 {V(vVb)}, 0x4000, {V(vVb)}')
    return L

def pre_tile():
    L = [f'v_add_u32 {V(vAd+3)}, {S(sM0K)}, {V(vL16)}']
    L += ['s_waitcnt vmcnt(24)'] + flush(0) + k_reads()
    L += ['s_waitcnt vmcnt(16)'] + flush(1) + ['s_waitcnt vmcnt(8)'] + flush(2) + ['s_waitcnt vmcnt(0)'] + flush(3)
    return L

def tile(first, var=0):
    mf = []
    for qb in range(3):
        for s in range(8):
            d = V(vS + 16*qb, 16)
            c = d if s else ('0' if first else V(vN + 16*qb, 16))
            mf.append(f'{MF} {d}, {V(vKf+4*s,4)}, {Qreg(qb,s)}, {c}')
    for qb in range(3):
        for a in range(4):
            for u in range(2):
                d = A(Oacc(a, qb), 16)
                c = '0' if (first and u == 0) else d
                mf.append(f'{MF} {d}, {V(vVf+(a*2+u)*4,4)}, {V(vP+8*qb+4*u,4)}, {c}')
    gaps = [[] for _ in range(48)]
    pre = ['s_waitcnt lgkmcnt(0)']
    gaps[0] += ([] if var else soff_calc(sSo, 2)) + ['s_waitcnt vmcnt(16)']
    spread(gaps, v_reads(), 1, 8)
    kg, vg_ = dma_groups(False), dma_groups(True)
    if var: kg, vg_ = [[] for _ in range(8)], [[] for _ in range(8)]
    ep = OPT['pre'] == 14
    if var == 14 and ep: vg_ = wo_dma(0) + wo_dma(1)
    if var == 15 and ep: kg = wo_dma(2) + wo_dma(3)
    if var == 15: gaps[0][0] = f's_waitcnt vmcnt({8 if ep else 0})'
    kpos = OPT['kpos']; vpos = OPT['vpos']
    for i in range(8): gaps[kpos[i]] += kg[i]
    gaps[vpos[0] - 1].append('s_waitcnt lgkmcnt(0)')
    for i in range(8): gaps[vpos[i]] += vg_[i]
    sm = OPT['sm']
    for qb in range(3): spread(gaps, sm_stream(qb, first, f'_{var}' if var else ''), sm[qb][0], sm[qb][1])
    kw = OPT['kw']
    nv = sum(1 for p in vpos if p < kw)
    if var != 15:
        gaps[kw].insert(0, f's_waitcnt vmcnt({(8 + nv * ep) if var else 16 + nv})')
        spread(gaps, k_reads(), kw, 46)
    gaps[47] += [f's_xor_b32 {S(sM0K)}, {S(sM0K)}, 0x4000', f's_add_u32 {S(sT)}, {S(sT)}, 1']
    return weave(mf, gaps, pre)

vI = 240
def ident_init():
    t, a, b = 16, 17, 18
    L = [f'v_lshrrev_b32 {V(t)}, 4, {V(vL16)}',
         f'v_bfe_u32 {V(a)}, {V(t)}, 1, 1', f'v_bfe_u32 {V(b)}, {V(t)}, 3, 2', f'v_lshl_add_u32 {V(a)}, {V(b)}, 1, {V(a)}',
         f'v_bfe_u32 {V(b)}, {V(t)}, 2, 1', f'v_bfe_u32 {V(b+1)}, {V(t)}, 5, 1', f'v_xor_b32 {V(b)}, {V(b)}, {V(b+1)}',
         f'v_lshl_add_u32 {V(a)}, {V(b)}, 4, {V(a)}',
         f'v_and_b32 {V(b)}, 1, {V(t)}', f'v_lshlrev_b32 {V(b)}, 4, {V(b)}', f'v_mov_b32 {V(b+1)}, 0x3f80', f'v_lshlrev_b32 {V(b)}, {V(b)}, {V(b+1)}']
    for i in range(8):
        L += [f'v_cmp_eq_u32 vcc, {i}, {V(a)}', 's_nop 1', f'v_cndmask_b32 {V(vI+i)}, 0, {V(b)}, vcc']
    return L

def combine():
    L = read_q(LDS_Q2) + ['COMBINE:']
    for qb in range(3):
        L += [f'v_mov_b32 {V(17+2*qb)}, {V(vL+qb)}', f'v_mov_b32 {V(16+2*qb)}, {V(vN+16*qb)}', 's_nop 0',
              f'v_permlane32_swap_b32 {V(17+2*qb)}, {V(vL+qb)}', 's_nop 0',
              f'v_add_f32 {V(17+2*qb)}, {V(17+2*qb)}, {V(vL+qb)}']
    L += [f's_lshl_b32 {S(sTmp)}, {S(sWv)}, 3', f'v_add_u32 {V(vAd)}, {S(sTmp)}, {V(vStat)}']
    for qb in range(3):
        L.append(f'ds_write_b64 {V(vAd)}, {V(16+2*qb,2)} offset:{1024*qb}')
    BL = [24 + 16*k for k in range(7)] + [176, 192]
    def rd(k):
        r, qb = 1 + k // 3, k % 3
        return [f'v_accvgpr_read_b32 {V(BL[k]+i)}, {A(Oacc(r,qb)+i)}' for i in range(16)]
    for k in range(8): L += rd(k)
    for r in range(1, 4):
        L += [f's_xor_b32 {S(sTmp)}, {S(sWv)}, {r}']
        if r == 1: L += [f's_mul_i32 {S(sTmp)}, {S(sTmp)}, 6144', f's_add_u32 {S(sTmp)}, {S(sTmp)}, {LDS_XR}']
        else: L += [f's_lshl_b32 {S(sTmp)}, {S(sTmp)}, 15']
        L += [f'v_add_u32 {V(vAd+r)}, {S(sTmp)}, {V(vL16)}']
    L += st2() + ['s_waitcnt lgkmcnt(0)', 's_barrier'] + st2(1)
    if OPT['pre'] in (2, 4): L += [f's_cmp_eq_u32 {S(sT)}, 16', 's_cbranch_scc0 CP1'] + wd(0) + wd(1) + ['CP1:']
    ST = [136, 192, 200]
    for qb in range(3):
        for hh in range(2): L.append(f'ds_read_b128 {V(ST[qb]+4*hh,4)}, {V(vStat)} offset:{1024*qb + 16*hh}')
    for qb in range(3):
        n = lambda r: V(ST[qb] + 2*r); l = lambda r: V(ST[qb] + 2*r + 1)
        L += [f's_waitcnt lgkmcnt({4 - 2*qb})']
        L += [f'v_min3_f32 {V(22)}, {n(0)}, {n(1)}, {n(2)}', f'v_min_f32 {V(22)}, {V(22)}, {n(3)}']
        for r in range(4): L.append(f'v_sub_f32 {n(r)}, {V(22)}, {n(r)}')
        L.append(f'v_sub_f32 {V(16+2*qb)}, {V(22)}, {V(16+2*qb)}')
        for r in range(4): L.append(f'v_exp_f32 {n(r)}, {n(r)}')
        L += [f'v_exp_f32 {V(16+2*qb)}, {V(16+2*qb)}', f'v_mul_f32 {V(23)}, {n(0)}, {l(0)}']
        for r in range(1, 4): L.append(f'v_fma_f32 {V(23)}, {n(r)}, {l(r)}, {V(23)}')
        L += [f'v_rcp_f32 {V(23)}, {V(23)}', 's_nop 0', f'v_mul_f32 {V(16+2*qb)}, {V(16+2*qb)}, {V(23)}']
    L += rd(8)
    roff = {1: 0, 2: 0, 3: 24576}
    for k in range(9):
        r, qb = 1 + k // 3, k % 3; b = BL[k]
        for i in range(8): L.append(f'v_pk_mul_f32 {V(b+2*i,2)}, {V(b+2*i,2)}, {V(16+2*qb,2)} op_sel_hi:[1,0]')
        for i in range(8): L.append(f'v_cvt_pk_bf16_f32 {V(b+i)}, {V(b+2*i)}, {V(b+2*i+1)}')
        for u in range(2): L.append(f'ds_write_b128 {V(vAd+r)}, {V(b+4*u,4)} offset:{roff[r] + (qb*2+u)*1024}')
    L += ['s_waitcnt lgkmcnt(12)']
    for qb in range(3):
        b = 24 + 16*qb
        for i in range(16): L.append(f'v_accvgpr_read_b32 {V(b+i)}, {A(Oacc(0,qb)+i)}')
        for i in range(8): L.append(f'v_pk_mul_f32 {V(b+2*i,2)}, {V(b+2*i,2)}, {V(16+2*qb,2)} op_sel_hi:[1,0]')
    L += [f's_mul_i32 {S(sTmp)}, {S(sWv)}, 6144', f's_add_u32 {S(sTmp)}, {S(sTmp)}, {LDS_XR}', f'v_add_u32 {V(vAd)}, {S(sTmp)}, {V(vL16)}',
          f's_lshl_b32 {S(sTmp)}, {S(sWv)}, 15', f'v_add_u32 {V(vAd+1)}, {S(sTmp)}, {V(vL16)}']
    L += st2() + ['s_waitcnt lgkmcnt(0)', 's_barrier'] + st2(1)
    if OPT['pre'] == 4: L += [f's_cmp_eq_u32 {S(sT)}, 16', 's_cbranch_scc0 CP2'] + wd(2) + wd(3) + ['CP2:']
    rds = []; mfs = []
    for r in range(1, 4):
        for u in range(2):
            for qb in range(3):
                d = 72 + len(rds) * 4
                rds.append(f'ds_read_b128 {V(d,4)}, {V(vAd if r == 1 else vAd+1)} offset:{roff[r] + (qb*2+u)*1024}')
                mfs.append(f'{MF} {V(24+16*qb,16)}, {V(vI+4*u,4)}, {V(d,4)}, {V(24+16*qb,16)}')
    L += rds[:12]
    for k in range(18):
        if k < 6: L += [rds[12+k], 's_waitcnt lgkmcnt(12)']
        else: L += [f's_waitcnt lgkmcnt({17-k})']
        L.append(mfs[k])
    L += st2()
    L += [f's_cmp_eq_u32 {S(sT)}, 16', 's_cbranch_scc0 CB1', 's_nop 7', 's_nop 3', 's_branch CB2', 'CB1:']
    L += soff_calc(sSo, 1)
    for i in range(8):
        if i % 4 == 0: L += [f's_add_u32 m0, {S(sM0K)}, {24576 + 4096*(i>>2)}', 's_nop 0']
        L.append(f'buffer_load_dwordx4 {V(vOffV)}, {S(sV,4)}, {S(sSo + (i>>2))} offen offset:{1024*(i&3)}{KVF} lds')
    L += ['CB2:']
    for qb in range(3):
        for i in range(8): L.append(f'v_cvt_pk_bf16_f32 {V(vVf+8*qb+i)}, {V(24+16*qb+2*i)}, {V(24+16*qb+2*i+1)}')
        L.append(f's_add_u32 {S(sTmp)}, {S(sOb)}, {qb*262144}')
        for u in range(2):
            L.append(f'buffer_store_dwordx4 {V(vVf+8*qb+4*u,4)}, {V(vL16)}, {S(sO,4)}, {S(sTmp)} offen offset:{1024*u}{STF}')
    L += [f's_add_u32 {S(sOb)}, {S(sOb)}, {12*262144}', 's_nop 1'] + st2()
    return L

PART_OFF = 20 << 20
sFl2, sPs = 54, 55
def advW():
    return [f's_add_u32 {S(sTmp)}, {S(sNW)}, {S(sRt)}', f's_and_b32 {S(sTmp)}, {S(sTmp)}, 15',
            f's_mul_i32 {S(sWs)}, {S(sTmp)}, 81920', f's_add_u32 {S(sWs)}, {S(sWs)}, {S(sWs0)}', f's_add_u32 {S(sNW)}, {S(sNW)}, 1']
def advO():
    return [f's_add_u32 {S(sTmp)}, {S(sNO)}, {S(sRt)}', f's_and_b32 {S(sTmp)}, {S(sTmp)}, 15',
            f's_lshl_b32 {S(sTmp)}, {S(sTmp)}, 12', f's_add_u32 {S(sOsA)}, {S(sOs0)}, {S(sTmp)}', f's_add_u32 {S(sNO)}, {S(sNO)}, 1']
slot = lambda n: 4096 * (n & 3) + 8192
def wo_dma(n):
    G = [[f's_add_u32 m0, {S(sM)}, {slot(n) + 1024*i}', f's_add_u32 {S(sTmp)}, {S(sWs)}, {i*5120}',
          f'buffer_load_dwordx4 {V(vOffW2)}, {S(sW,4)}, {S(sTmp)} offen{K2F} lds'] for i in range(4)]
    G[0] = advW() + G[0]
    return G
wd = lambda n: sum(wo_dma(n), [])

def op_setup():
    mi, ni, kq, j = sOsA, sOsB, sG, sWs
    L = [f's_mov_b32 {S(sW)}, s48', f's_and_b32 {S(sW+1)}, s49, 0xffff', f's_mov_b32 {S(sW+2)}, 5242880',
         f's_mov_b32 {S(sX)}, s50', f's_and_b32 {S(sX+1)}, s51, 0xffff', f's_mov_b32 {S(sX+2)}, 1966080',
         f's_add_u32 {S(sTag)}, {S(sGen)}, 0x9e3779b1', f's_lshl_b32 {S(sM)}, {S(sWv)}, 15',
         f's_lshr_b32 {S(j)}, s2, 3', f's_mul_i32 {S(mi)}, {S(j)}, 52', f's_lshr_b32 {S(mi)}, {S(mi)}, 8',
         f's_mul_i32 {S(ni)}, {S(mi)}, 5', f's_sub_u32 {S(ni)}, {S(j)}, {S(ni)}', f's_and_b32 {S(kq)}, s2, 3',
         f's_mul_i32 {S(sRt)}, {S(mi)}, 86', f's_lshr_b32 {S(sRt)}, {S(sRt)}, 5', f's_mul_i32 {S(sTmp)}, {S(ni)}, 103', f's_lshr_b32 {S(sTmp)}, {S(sTmp)}, 5',
         f's_add_u32 {S(sRt)}, {S(sRt)}, {S(sTmp)}', f's_mov_b32 {S(sNW)}, 0', f's_mov_b32 {S(sNO)}, 0',
         f's_mul_i32 {S(sWs0)}, {S(kq)}, 1310720', f's_mul_i32 s3, {S(sWv)}, 20480', f's_add_u32 {S(sWs0)}, {S(sWs0)}, s3',
         f's_lshl_b32 s3, {S(ni)}, 8', f's_add_u32 {S(sWs0)}, {S(sWs0)}, s3',
         f's_lshl_b32 {S(mi)}, {S(mi)}, 2', f's_add_u32 {S(mi)}, {S(mi)}, {S(sWv)}',
         f's_mul_i32 {S(sOut)}, {S(mi)}, 81920', f's_add_u32 {S(sOut)}, {S(sOut)}, s3', f's_mul_i32 s3, {S(sBr)}, 1280', f's_add_u32 {S(sOut)}, {S(sOut)}, s3',
         f's_lshl_b32 s3, {S(kq)}, 6', f's_add_u32 {S(sOut)}, {S(sOut)}, s3',
         f's_lshl_b32 {S(sOs0)}, {S(mi)}, 18', f's_lshl_b32 s3, {S(kq)}, 16', f's_add_u32 {S(sOs0)}, {S(sOs0)}, s3',
         f's_lshl_b32 s3, {S(sBr)}, 12', f's_lshl_b32 {S(sTmp)}, {S(kq)}, 7', f's_add_u32 s3, s3, {S(sTmp)}',
         f's_lshl_b32 {S(sFlg)}, {S(sBp)}, 9', f's_add_u32 {S(sFlg)}, {S(sFlg)}, s3',
         f's_and_b32 {S(sTmp)}, {S(sH)}, 7', f's_lshl_b32 {S(sTmp)}, {S(sTmp)}, 2', f's_add_u32 {S(sFlg)}, {S(sFlg)}, {S(sTmp)}',
         f's_mul_i32 {S(sPoll)}, {S(mi)}, 43', f's_lshr_b32 {S(sPoll)}, {S(sPoll)}, 7', f's_lshl_b32 {S(sPoll)}, {S(sPoll)}, 9',
         f's_add_u32 {S(sPoll)}, {S(sPoll)}, s3',
         f's_lshl_b32 s3, {S(sBr)}, 5', f's_add_u32 s3, s3, {S(j)}', f's_lshl_b32 {S(sFl2)}, s3, 7', f's_lshl_b32 {S(sTmp)}, {S(kq)}, 2',
         f's_add_u32 {S(sFl2)}, {S(sFl2)}, {S(sTmp)}', f's_add_u32 {S(sFl2)}, {S(sFl2)}, 8192',
         f's_mul_i32 {S(sPs)}, s3, 196608', f's_lshl_b32 s3, {S(sWv)}, 12', f's_add_u32 {S(sPs)}, {S(sPs)}, s3',
         f'v_lshrrev_b32 v17, 8, {V(vL16)}', 'v_lshlrev_b32 v16, 6, v17', f'v_and_b32 v18, 0xf0, {V(vL16)}', 'v_xor_b32 v16, v16, v18',
         'v_mul_u32_u24 v17, 0x500, v17', f'v_add_u32 {V(vOffW2)}, v16, v17',
         f's_cmp_eq_u32 {S(sWv)}, 0', 's_cbranch_scc0 NOCLR',
         f'v_lshlrev_b32 v16, 7, {V(vL16)}', f'v_mov_b32 v17, {S(sGen)}', f'v_mov_b32 v18, {LDS_CNT}', 'v_mov_b32 v19, 0', 's_mov_b64 exec, 3',
         f'buffer_store_dword v17, v16, {S(sF,4)}, {S(sFlg)} offen sc1', f'buffer_store_dword v17, v19, {S(sF,4)}, {S(sFl2)} offen sc1',
         'ds_write_b32 v18, v19', 's_mov_b64 exec, -1', 's_nop 1', 'NOCLR:']
    return L

def publish(last, tag, so, t=16):
    return [f'v_mov_b32 {V(t)}, {LDS_CNT}', f'v_mov_b32 {V(t+1)}, 1', 's_mov_b64 exec, 1', f'ds_add_rtn_u32 {V(t+2)}, {V(t)}, {V(t+1)}',
            f'v_mov_b32 {V(t+3)}, {S(sTag)}', f'v_mov_b32 {V(t+4)}, 0', 's_waitcnt lgkmcnt(0)', f'v_cmp_eq_u32 vcc, {last}, {V(t+2)}',
            f's_cbranch_vccz {tag}', f'buffer_store_dword {V(t+3)}, {V(t+4)}, {S(sF,4)}, {S(so)} offen sc1', f'{tag}:', 's_mov_b64 exec, -1',
            f's_add_u32 {S(sFlg)}, {S(sFlg)}, 2048', 's_nop 0']

def delay(tag):
    if not OPT['dly']: return []
    return [f's_mov_b32 {S(sTmp2)}, {OPT["dly"]}', f'{tag}W:', 's_nop 15', f's_sub_u32 {S(sTmp2)}, {S(sTmp2)}, 1', f's_cbranch_scc0 {tag}W']
def poll(tag, pl, first=True):
    L = [f's_mov_b32 {S(sG)}, {SPIN}', f's_branch {tag}{"B" if first else "C"}', f'{tag}:'] + delay(tag)
    return L + [f'{tag}B:', pl, f's_sub_u32 {S(sG)}, {S(sG)}, 1', f's_cbranch_scc1 {tag}D', f'{tag}C:', 's_waitcnt vmcnt(0)',
                f'v_cmp_ne_u32 vcc, {S(sTag)}, v1', f's_cbranch_vccnz {tag}', f'{tag}D:']

def oproj():
    vRd, vPo, vOa, vP2, vOf, vWf = 2, 10, 11, 15, 24, 88
    pl = f'buffer_load_dword v1, {V(vPo)}, {S(sF,4)}, {S(sPoll)} offen sc1'
    L = [f'v_lshrrev_b32 v21, 4, {V(vL16)}', 'v_and_b32 v13, 7, v21', f'v_lshlrev_b32 {V(vPo)}, 2, v13', pl,
         'v_lshrrev_b32 v12, 5, v21', 'v_bfe_u32 v13, v21, 2, 2', 'v_lshlrev_b32 v14, 3, v12', 'v_add_u32 v14, v14, v13',
         'v_lshlrev_b32 v14, 8, v14', f's_and_b32 {S(sTmp)}, s2, 3', f'v_xor_b32 v13, {S(sTmp)}, v13',
         'v_lshlrev_b32 v13, 6, v13', 'v_add_u32 v14, v14, v13',
         'v_and_b32 v13, 16, v21', 'v_lshlrev_b32 v13, 1, v13', 'v_add_u32 v14, v14, v13',
         'v_and_b32 v13, 1, v21', 'v_lshlrev_b32 v13, 4, v13', 'v_add_u32 v14, v14, v13',
         'v_and_b32 v13, 2, v21', 'v_lshlrev_b32 v13, 2, v13', f'v_add_u32 {V(vRd)}, v14, v13']
    for a in range(1, 4): L.append(f'v_xor_b32 {V(vRd+a)}, {64*a}, {V(vRd)}')
    for a in range(4): L.append(f'v_add_u32 {V(vRd+4+a)}, 0x10000, {V(vRd+a)}')
    L += ['v_and_b32 v13, 31, v21', 'v_mul_u32_u24 v13, 0xa00, v13', 'v_lshlrev_b32 v12, 4, v12', f'v_add_u32 {V(vOa)}, v12, v13',
          'v_and_b32 v13, 3, v21', f'v_lshlrev_b32 {V(vP2)}, 2, v13',
          f's_add_u32 {S(sK)}, {S(sF)}, {PART_OFF - FLAG_OFF}', f's_addc_u32 {S(sK+1)}, {S(sF+1)}, 0', f's_mov_b32 {S(sK+2)}, {64*196608}']
    for i in range(64): L.append(f'v_accvgpr_write_b32 {A(i)}, 0')
    L += ['s_waitcnt vmcnt(1)'] + publish(7, 'PUB2', sFlg) + stamp()
    L += ['s_cmp_ge_u32 s2, 240', 's_cbranch_scc1 NOTILE']
    def wreads(n):
        return [f'ds_read_b64_tr_b16 {V(vWf + 64*(n&1) + (ks*4+a)*4 + 2*wp, 2)}, {V(vRd + 4*(ks>>1) + a)} offset:{slot(n) + 32768*(ks&1) + 1024*wp}'
                for ks in range(4) for a in (1, 2, 3, 0) for wp in range(2)]
    def oloads(n):
        G = [[f'buffer_load_dwordx4 {V(vOf + 16*(n&3) + 4*ks, 4)}, {V(vL16)}, {S(sO,4)}, {S(sOsA)} offen offset:{1024*ks} sc1'] for ks in range(4)]
        G[0] = advO() + G[0]
        return G
    ol = lambda n: sum(oloads(n), [])
    pre = OPT['pre']
    for n in range(pre, 2): L += wd(n)
    L += poll('POLL', pl, False)
    L += ol(0) + (wd(2) if pre < 3 else []) + ol(1) + (wd(3) if pre < 4 else []) + ol(2)
    L += [f's_waitcnt vmcnt({24 if pre < 3 else 4})', 's_barrier'] + wreads(0) + stamp()
    def body(n, w, o, wait):
        mf = [f'{MF} {A(a*16,16)}, {V(vWf+64*(n&1)+(ks*4+a)*4,4)}, {V(vOf+16*(n&3)+4*ks,4)}, {A(a*16,16)}' for ks in range(4) for a in (1, 2, 3, 0)]
        gaps = [[] for _ in range(16)]
        if n != 15: spread(gaps, wreads(n + 1), 0, OPT['wrend'])
        G = (wo_dma(n) if w else []) + (oloads(n + 3) if o else [])
        if G: spread_groups(gaps, G, 0, 15)
        return weave(mf, gaps, [f's_waitcnt vmcnt({wait}) lgkmcnt(0)'] + (['s_barrier'] if n != 15 else []))
    L += [f's_mov_b32 {S(sG)}, 0', 'OP_LOOP:']
    for b in range(4): L += body(b, True, True, 16)
    L += [f's_add_u32 {S(sG)}, {S(sG)}, 1', f's_cmp_lt_u32 {S(sG)}, 3', 's_cbranch_scc1 OP_LOOP']
    L += body(12, False, True, 16) + body(13, False, False, 12) + body(14, False, False, 4) + body(15, False, False, 0)
    L += stamp() + ['s_and_b32 s3, s2, 3']
    for a in range(1, 4):
        L += [f's_xor_b32 {S(sTmp)}, s3, {a}', f's_mul_i32 {S(sTmp)}, {S(sTmp)}, 49152', f's_add_u32 {S(sTmp)}, {S(sTmp)}, {S(sPs)}',
              f's_add_u32 {S(sTmp)}, {S(sTmp)}, {(a-1)*16384}']
        b = 88 + 16 * a
        for i in range(16): L.append(f'v_accvgpr_read_b32 {V(b+i)}, {A(a*16+i)}')
        for i in range(8): L.append(f'v_cvt_pk_bf16_f32 {V(b+i)}, {V(b+2*i)}, {V(b+2*i+1)}')
        for u in range(2): L.append(f'buffer_store_dwordx4 {V(b+4*u,4)}, {V(vL16)}, {S(sK,4)}, {S(sTmp)} offen offset:{1024*u} sc1')
    L += ['s_mul_i32 s3, s3, 49152', f's_add_u32 {S(sPs)}, {S(sPs)}, s3', f's_and_b32 {S(sPoll)}, {S(sFl2)}, 0xfff0']
    L += ['s_waitcnt vmcnt(0)'] + publish(11, 'PUB3', sFl2) + stamp()
    L += poll('POLM', f'buffer_load_dword v1, {V(vP2)}, {S(sF,4)}, {S(sPoll)} offen sc1') + stamp()
    for a in range(3):
        if a: L.append(f's_add_u32 {S(sPs)}, {S(sPs)}, 16384')
        for u in range(2): L.append(f'buffer_load_dwordx4 {V(40+8*a+4*u,4)}, {V(vL16)}, {S(sK,4)}, {S(sPs)} offen offset:{1024*u} sc1')
    for k in range(6):
        L += [f's_waitcnt vmcnt({5-k})', f'{MF} {A(0,16)}, {V(vI+4*(k&1),4)}, {V(40+4*k,4)}, {A(0,16)}']
    L += ['s_nop 7', 's_nop 3']
    for i in range(16): L.append(f'v_accvgpr_read_b32 {V(24+i)}, {A(i)}')
    for i in range(8): L.append(f'v_cvt_pk_bf16_f32 {V(88+i)}, {V(24+2*i)}, {V(25+2*i)}')
    for u in range(2): L.append(f'buffer_store_dwordx4 {V(88+4*u,4)}, {V(vOa)}, {S(sX,4)}, {S(sOut)} offen offset:{32*u}{fl("outflag")}')
    L += ['s_branch K1_FIN', 'NOTILE:', 's_cmp_eq_u32 s2, 255', 's_cbranch_scc0 K1_FIN', f's_cmp_eq_u32 {S(sWv)}, 0', 's_cbranch_scc0 K1_FIN']
    L += [f's_mov_b32 {S(sG)}, {SPIN}', f'v_lshlrev_b32 v24, 3, {V(vL16)}', 'GPOLL:'] + delay('GD') + [f'buffer_load_dwordx4 v[16:19], v24, {S(sF,4)}, 0 offen sc1',
          f'buffer_load_dwordx4 v[20:23], v24, {S(sF,4)}, 0 offen offset:16 sc1', f's_sub_u32 {S(sG)}, {S(sG)}, 1',
          's_cbranch_scc1 GDONE', 's_waitcnt vmcnt(0)']
    for i in range(8): L.append(f'v_xor_b32 {V(16+i)}, {S(sTag)}, {V(16+i)}')
    L += ['v_or3_b32 v16, v16, v17, v18', 'v_or3_b32 v19, v19, v20, v21', 'v_or3_b32 v16, v16, v22, v23', 'v_or_b32 v16, v16, v19',
          'v_cmp_ne_u32 vcc, 0, v16', 's_cbranch_vccnz GPOLL', 'GDONE:', 's_waitcnt vmcnt(0)', f'v_mov_b32 v17, {S(sTag)}', 'v_mov_b32 v16, 16384', 's_mov_b64 exec, 1',
          f'buffer_store_dword v17, v16, {S(sF,4)}, 0 offen sc1', 's_mov_b64 exec, -1', 's_branch K1_FIN']
    return L

def k1():
    L = k1_prologue()
    L += k1_qproj()
    L += stamp()
    L += pre_tile() + op_setup() + ident_init() + tile(True)
    L += ['LOOP:'] + tile(False)
    L += [f's_cmp_eq_u32 {S(sT)}, 14', 's_cbranch_scc1 PEEL', f's_cmp_lg_u32 {S(sT)}, 8', 's_cbranch_scc1 LOOP', 's_nop 7', 's_nop 7']
    L += stamp()
    L += combine()
    L += [f's_cmp_eq_u32 {S(sT)}, 16', 's_cbranch_scc1 OPROJ']
    L += stamp()
    L += tile(True) + ['s_waitcnt vmcnt(16)'] + publish(3, 'PUB1', sFlg)
    L += ['s_branch LOOP']
    L += ['PEEL:'] + tile(False, 14) + tile(False, 15) + stamp() + ['s_nop 7', 's_nop 7', 's_branch COMBINE']
    L += ['OPROJ:'] + oproj()
    for tg in ('', '_14', '_15'):
        for qb in range(3): L += slow_path(qb, tg)
    L += ['K1_FIN:'] + stamp_dump(0, sWv, sTmp)
    L += ['K1_END:', 's_endpgm']
    return L

def emit(kname, L, nv, acc):
    out = [f'.globl {kname}', '.p2align 8', f'.type {kname},@function', f'{kname}:']
    for t in L: out.append(t if is_label(t) else '    ' + t)
    desc = ['.p2align 6', f'.amdhsa_kernel {kname}', f'  .amdhsa_next_free_vgpr {nv}', '  .amdhsa_next_free_sgpr 102',
            f'  .amdhsa_accum_offset {acc}', '  .amdhsa_group_segment_fixed_size 0', '  .amdhsa_kernarg_size 104',
            '  .amdhsa_user_sgpr_count 2', '  .amdhsa_user_sgpr_kernarg_segment_ptr 1', '  .amdhsa_system_sgpr_workgroup_id_x 1',
            '.end_amdhsa_kernel']
    return out, desc

def main():
    a = k1()
    bad = check_seq(code_only(a), 'k1')
    k1n = NAME + '_kernel'
    hdr = ['; @launch grid=(256,1,1) block=(256,1,1) lds=163840', '.amdgcn_target "amdgcn-amd-amdhsa--gfx950"', '.text']
    c1, d1 = emit(k1n, a, 512, 256)
    txt = '\n'.join(hdr + c1 + ['.section .rodata,"a"'] + d1) + '\n'
    open(sys.argv[1], 'w').write(txt)
    print('hazards', bad, 'lines', len(a), 'stamps', stamp_n[0])
main()
```

```python
import sys, struct, math
sys.path.insert(0, 'gen')
from asmlib import *

NAME = 'concat_heads__gqa_block_cached__mha_block_cached__near_ridge'
def f32(x): return '0x%08x' % struct.unpack('<I', struct.pack('<f', x))[0]
CSCALE = f32(128 ** -0.5 * math.log2(math.e))

OPT = dict(dl2=0, wdk=8, grp=1, ordA='mid', ordB='late', outflag='', dly=8, wrend=11, pre=2, oflag='sc1', k2diag=0, k2rot=8, kvflag='nt', early=8, per=4, stamps=0, rot=0, half=0, qrot=1, nA=2, wxflag='', k2flag='', stflag='sc1')
OPT.update(kpos=[1,4,7,10,13,16,19,22], vpos=[24,27,30,33,36,39,42,45], sm=[(10,19),(20,29),(30,39)], kw=40, t0pos=[10,12,14,16,18,20,22,24])
for a in sys.argv[2:]:
    k, v = a.split('=')
    OPT[k] = '' if v == 'none' else eval(v) if v[0] in '[(' else (v if not v.lstrip('-').isdigit() else int(v))
fl = lambda k: (' ' + OPT[k].replace('+', ' ')) if OPT[k] else ''
KVF, WXF, K2F, STF = fl('kvflag'), fl('wxflag'), fl('k2flag'), fl('stflag')

def R(f, a, n=1):
    return f'{f}{a}' if n == 1 else f'{f}[{a}:{a+n-1}]'
V = lambda a, n=1: R('v', a, n)
A = lambda a, n=1: R('a', a, n)
S = lambda a, n=1: R('s', a, n)
MF = 'v_mfma_f32_32x32x16_bf16'

sK, sV, sW, sX, sO = 4, 8, 12, 16, 20
sWv, sBr, sH, sBp, sT, sSo, sSo2, sM0K, sW8, sTmp, sTmp2 = 24, 25, 26, 27, 28, 29, 30, 31, 32, 33, 34
sWb, sXb, sWm, sXm, sThr, sOb, sQw, sRot = 35, 36, 37, 38, 39, 56, 57, 58
sCh, sCw, sCx = 44, 45, 46
sDbg = 60
sSt = 64
vL16, vKb, vVb, vOffK, vOffV = 0, 1, 2, 3, 7
vL, vTs, vAd, vE, vP, vS, vN, vKf, vVf, vQ2 = 8, 11, 12, 16, 24, 48, 96, 144, 176, 208
vOffW, vOffX, vWA, vXA = 240, 241, 243, 247
vStat = 255
def Qreg(qb, s):
    return A(192 + qb * 32 + 4 * s, 4) if qb < 2 else V(vQ2 + 4 * s, 4)
def Oacc(a, qb): return (a * 3 + qb) * 16
sQs = 59
LDS_Q1, LDS_Q2, LDS_STAT, LDS_XR = 24576, 131072, 155648, 131072
SB = [0, 40960, 81920, 122880]
LDS_DUMMY = 158720
LDS_CNT = 163328
FLAG_OFF = 12582912
sF = 92
sRt, sNW, sNO, sWs0, sOs0, sWs, sOsA, sOsB, sOut, sFlg, sPoll, sG, sTag, sGen, sM = 35, 36, 37, 38, 40, 41, 42, 43, 44, 45, 46, 47, 52, 53, 57
vOffW2 = 248
SPIN = 30000

stamp_n = [0]
def stamp():
    if not OPT['stamps']: return []
    i = stamp_n[0]; stamp_n[0] += 1
    return [f's_memrealtime {S(sSt + 2 * i, 2)}']

def st2(w=0):
    if OPT['stamps'] != 2: return []
    return stamp() + (['s_waitcnt lgkmcnt(0)'] if w else [])
def stamp_init(koff):
    if not OPT['stamps']: return []
    stamp_n[0] = 0
    return [f's_load_dwordx2 {S(sDbg,2)}, s[0:1], 96', 's_memtime s[96:97]'] + stamp()
def stamp_dump(koff, swv, stmp):
    if not OPT['stamps']: return []
    L = ['s_waitcnt vmcnt(0)'] + stamp() + ['s_memtime s[98:99]', 's_waitcnt lgkmcnt(0)']
    L += [f's_add_u32 {S(sDbg)}, {S(sDbg)}, {(16<<20) + koff}', f's_addc_u32 {S(sDbg+1)}, {S(sDbg+1)}, 0',
          f's_and_b32 {S(sDbg+1)}, {S(sDbg+1)}, 0xffff', f's_mov_b32 {S(sDbg+2)}, 65536', f's_mov_b32 {S(sDbg+3)}, 0x20000',
          f's_lshl_b32 {S(stmp)}, s2, 2', f's_add_u32 {S(stmp)}, {S(stmp)}, {S(swv)}', f's_lshl_b32 {S(stmp)}, {S(stmp)}, 6', 'v_mov_b32 v1, 0']
    for i in range(stamp_n[0]):
        L += [f'v_mov_b32 v2, {S(sSt+2*i)}', f'buffer_store_dword v2, v1, {S(sDbg,4)}, {S(stmp)} offen offset:{4*i}']
    L += ['s_sub_u32 s98, s98, s96', 'v_mov_b32 v2, s98', f'buffer_store_dword v2, v1, {S(sDbg,4)}, {S(stmp)} offen offset:60']
    L += ['s_getreg_b32 s98, hwreg(HW_REG_XCC_ID)', 'v_mov_b32 v2, s98', f'buffer_store_dword v2, v1, {S(sDbg,4)}, {S(stmp)} offen offset:56']
    return L

def k1_prologue():
    L = [
        f's_cmp_ge_u32 s2, {128 if OPT["half"] else 256}', 's_cbranch_scc1 K1_END',
        's_load_dwordx8 s[40:47], s[0:1], 0', 's_load_dwordx8 s[48:55], s[0:1], 40',
        f's_load_dwordx2 {S(sO,2)}, s[0:1], 96',
    ]
    L += stamp_init(0)
    L += [
        's_and_b32 s3, s2, 7', f's_lshr_b32 {S(sTmp)}, s2, 3', f's_lshr_b32 {S(sBr)}, s3, 2',
        's_and_b32 s3, s3, 3', 's_lshl_b32 s3, s3, 3', f's_and_b32 {S(sH)}, {S(sTmp)}, 7',
        f's_add_u32 {S(sH)}, {S(sH)}, s3', f's_lshr_b32 {S(sBp)}, {S(sTmp)}, 3',
        'v_lshrrev_b32 v20, 6, v0', 'v_and_b32 v21, 63, v0', 's_nop 0',
        f'v_readfirstlane_b32 {S(sWv)}, v20',
        'v_lshlrev_b32 v0, 4, v21',
        'v_lshrrev_b32 v22, 4, v21',
        'v_and_b32 v23, 15, v21',
        'v_xor_b32 v24, v23, v22', 'v_lshlrev_b32 v24, 4, v24', 'v_lshlrev_b32 v25, 8, v22',
        f'v_add_u32 {V(vOffK)}, v24, v25',
        f'v_xor_b32 {V(vOffK+1)}, 64, {V(vOffK)}', f'v_xor_b32 {V(vOffK+2)}, 0x80, {V(vOffK)}',
        f'v_xor_b32 {V(vOffK+3)}, 0xc0, {V(vOffK)}',
        'v_lshlrev_b32 v24, 2, v22', 'v_xor_b32 v24, v23, v24', 'v_lshlrev_b32 v24, 4, v24',
        f'v_add_u32 {V(vOffV)}, v24, v25', 'v_lshlrev_b32 v25, 13, v22', f'v_add_u32 {V(vOffW)}, v24, v25',
        'v_and_b32 v24, 7, v21', 'v_xor_b32 v24, v24, v22', 'v_lshlrev_b32 v24, 4, v24',
        'v_lshrrev_b32 v25, 3, v21', 'v_mul_u32_u24 v25, 0x500, v25', f'v_add_u32 {V(vOffX)}, v24, v25',
        f'v_xor_b32 {V(vOffX+1)}, 64, {V(vOffX)}',
        f's_lshl_b32 {S(sW8)}, {S(sWv)}, 13', f's_lshl_b32 {S(sM0K)}, {S(sWv)}, 15',
        f's_lshl_b32 {S(sWb)}, {S(sWv)}, 17', f's_lshl_b32 {S(sWm)}, {S(sWv)}, 12',
        f's_mul_i32 {S(sXm)}, {S(sWv)}, 6144', f's_add_u32 {S(sXm)}, {S(sXm)}, 16384',
        f's_lshr_b32 {S(sTmp)}, {S(sWv)}, 1', f's_mul_i32 {S(sXb)}, {S(sTmp)}, 491520',
        f's_and_b32 {S(sTmp2)}, {S(sWv)}, 1', f's_mul_i32 s3, {S(sTmp2)}, 61440', f's_add_u32 {S(sXb)}, {S(sXb)}, s3',
        f's_mov_b32 {S(sThr)}, {f32(2.0**30)}',
        f's_mul_i32 {S(sQw)}, {S(sTmp)}, {LDS_Q2 - LDS_Q1}', f's_lshl_b32 s3, {S(sTmp2)}, 12',
        f's_add_u32 {S(sQw)}, {S(sQw)}, s3', f's_add_u32 {S(sQw)}, {S(sQw)}, {LDS_Q1}',
        f's_mul_i32 {S(sQs)}, {S(sTmp)}, 24576', f's_sub_u32 {S(sQs)}, 32768, {S(sQs)}',
        'v_lshrrev_b32 v26, 5, v21', 'v_and_b32 v27, 31, v21', 'v_bfe_u32 v28, v21, 2, 2',
        'v_and_b32 v29, 16, v21', 'v_lshlrev_b32 v29, 1, v29',
        'v_and_b32 v30, 1, v21', 'v_lshlrev_b32 v30, 4, v30', 'v_add_u32 v29, v29, v30',
        'v_and_b32 v30, 2, v21', 'v_lshlrev_b32 v30, 2, v30', 'v_add_u32 v29, v29, v30',
        'v_xor_b32 v30, v26, v23', 'v_lshlrev_b32 v30, 4, v30', 'v_lshlrev_b32 v31, 8, v27',
        'v_add_u32 v30, v30, v31', f'v_add_u32 {V(vKb)}, {S(sM0K)}, v30',
        'v_lshlrev_b32 v30, 2, v26', 'v_add_u32 v30, v30, v28', 'v_lshlrev_b32 v30, 8, v30',
        f'v_xor_b32 v31, {S(sWv)}, v28', 'v_lshlrev_b32 v31, 6, v31', 'v_add3_u32 v30, v30, v31, v29',
        f'v_add_u32 v30, {S(sM0K)}, v30', f'v_add_u32 {V(vVb)}, 0x2000, v30',
        'v_lshlrev_b32 v30, 3, v26', 'v_add_u32 v30, v30, v28', 'v_lshlrev_b32 v30, 8, v30',
        f's_lshl_b32 s3, {S(sTmp2)}, 1', 'v_xor_b32 v31, s3, v28', 'v_lshlrev_b32 v31, 6, v31',
        f'v_add3_u32 {V(vWA)}, v30, v31, v29', f'v_xor_b32 {V(vWA+1)}, 64, {V(vWA)}',
        f'v_add_u32 {V(vWA+2)}, {SB[2]}, {V(vWA)}', f'v_add_u32 {V(vWA+3)}, {SB[2]}, {V(vWA+1)}',
        f's_mul_i32 s3, {S(sTmp)}, 12288', 's_add_u32 s3, s3, 16384',
        'v_bfe_u32 v30, v21, 1, 3', 'v_xor_b32 v30, v30, v26', 'v_lshlrev_b32 v30, 4, v30',
        'v_lshlrev_b32 v31, 7, v27', f'v_add3_u32 {V(vXA)}, v30, v31, s3',
    ]
    for ks in range(1, 4):
        L += [f'v_xor_b32 {V(vXA+ks)}, {32*ks}, {V(vXA)}']
    for ks in range(4):
        L += [f'v_add_u32 {V(vXA+4+ks)}, {SB[2]}, {V(vXA+ks)}']
    L += [f'v_lshlrev_b32 {V(vStat)}, 5, v27', f'v_add_u32 {V(vStat)}, {LDS_STAT}, {V(vStat)}']
    L += [
        's_waitcnt lgkmcnt(0)',
        f's_cmp_eq_u32 {S(sBr)}, 0',
        's_cselect_b64 s[40:41], s[40:41], s[48:49]', 's_cselect_b64 s[42:43], s[42:43], s[50:51]',
        's_cselect_b64 s[44:45], s[44:45], s[52:53]', 's_cselect_b64 s[46:47], s[46:47], s[54:55]',
        f's_lshl_b32 s3, {S(sBp)}, 5', f's_add_u32 s3, s3, {S(sH)}', 's_lshl_b32 s3, s3, 18',
        f's_add_u32 {S(sK)}, s42, s3', f's_addc_u32 {S(sK+1)}, s43, 0', f's_and_b32 {S(sK+1)}, {S(sK+1)}, 0xffff',
        f's_sub_u32 {S(sK+2)}, 0x4000000, s3', f's_mov_b32 {S(sK+3)}, 0x20000',
        f's_add_u32 {S(sV)}, s44, s3', f's_addc_u32 {S(sV+1)}, s45, 0', f's_and_b32 {S(sV+1)}, {S(sV+1)}, 0xffff',
        f's_sub_u32 {S(sV+2)}, 0x4000000, s3', f's_mov_b32 {S(sV+3)}, 0x20000',
        f's_lshl_b32 s3, {S(sH)}, 8',
        f's_add_u32 {S(sW)}, s46, s3', f's_addc_u32 {S(sW+1)}, s47, 0', f's_and_b32 {S(sW+1)}, {S(sW+1)}, 0xffff',
        f's_sub_u32 {S(sW+2)}, 5242880, s3', f's_mov_b32 {S(sW+3)}, 0x20000',
        f's_mul_i32 s3, {S(sBp)}, 122880',
        f's_add_u32 {S(sX)}, s40, s3', f's_addc_u32 {S(sX+1)}, s41, 0', f's_and_b32 {S(sX+1)}, {S(sX+1)}, 0xffff',
        f's_sub_u32 {S(sX+2)}, 983040, s3', f's_mov_b32 {S(sX+3)}, 0x20000',
        f's_mul_i32 s3, {S(sBr)}, 40', 's_add_u32 s3, s3, 32', 's_load_dwordx2 s[48:49], s[0:1], s3', 's_load_dwordx2 s[50:51], s[0:1], 80',
        f's_add_u32 {S(sF)}, {S(sO)}, {FLAG_OFF}', f's_addc_u32 {S(sF+1)}, {S(sO+1)}, 0', f's_load_dword {S(sGen)}, {S(sF,2)}, 196608',
        f's_and_b32 {S(sF+1)}, {S(sF+1)}, 0xffff', f's_mov_b32 {S(sF+2)}, 196736', f's_mov_b32 {S(sF+3)}, 0x20000',
        f's_mul_i32 s3, {S(sBr)}, 6291456',
        f's_add_u32 {S(sO)}, {S(sO)}, s3', f's_addc_u32 {S(sO+1)}, {S(sO+1)}, 0', f's_and_b32 {S(sO+1)}, {S(sO+1)}, 0xffff',
        f's_mov_b32 {S(sO+2)}, 6291456', f's_mov_b32 {S(sO+3)}, 0x20000',
        f's_mul_i32 {S(sOb)}, {S(sBp)}, 768', f's_lshl_b32 s3, {S(sH)}, 3', f's_add_u32 {S(sOb)}, {S(sOb)}, s3',
        f's_lshl_b32 s3, {S(sWv)}, 1', f's_add_u32 {S(sOb)}, {S(sOb)}, s3', f's_lshl_b32 {S(sOb)}, {S(sOb)}, 10',
        f's_mov_b32 {S(sT)}, 0',
    ]
    if OPT['rot']:
        L += [f's_lshr_b32 {S(sRot)}, s2, 3', f's_and_b32 {S(sRot)}, {S(sRot)}, 7']
    else:
        L += [f's_mov_b32 {S(sRot)}, 0']
    return L

def stage_dma(j):
    sb = SB[j % 4]; G = []
    for i in range(4):
        G.append([f's_add_u32 m0, {S(sWm)}, {sb + 1024*i}', f's_add_u32 {S(sTmp)}, {S(sCw)}, {i*32768}',
                  f'buffer_load_dwordx4 {V(vOffW)}, {S(sW,4)}, {S(sTmp)} offen{WXF} lds'])
    for i in range(6):
        G.append([f's_add_u32 m0, {S(sXm)}, {sb + 1024*i}', f's_add_u32 {S(sTmp)}, {S(sCx)}, {i*10240}',
                  f'buffer_load_dwordx4 {V(vOffX + (i&1))}, {S(sX,4)}, {S(sTmp)} offen{WXF} lds'])
    G[-1] += [f's_add_u32 {S(sCh)}, {S(sCh)}, 1', f's_cmp_eq_u32 {S(sCh)}, 10', f's_cselect_b32 {S(sCh)}, 0, {S(sCh)}',
              f's_lshl_b32 {S(sCw)}, {S(sCh)}, 19', f's_add_u32 {S(sCw)}, {S(sCw)}, {S(sWb)}',
              f's_lshl_b32 {S(sCx)}, {S(sCh)}, 7', f's_add_u32 {S(sCx)}, {S(sCx)}, {S(sXb)}']
    return G

def soff_calc(dst, tadd):
    return [f's_add_u32 {S(sTmp)}, {S(sT)}, {tadd}', f's_lshr_b32 {S(sTmp2)}, {S(sTmp)}, 3', f's_lshl_b32 {S(sTmp2)}, {S(sTmp2)}, 25',
            f's_add_u32 {S(sTmp)}, {S(sTmp)}, {S(sRot)}',
            f's_and_b32 {S(sTmp)}, {S(sTmp)}, 7', f's_lshl_b32 {S(sTmp)}, {S(sTmp)}, 15', f's_add_u32 {S(dst)}, {S(sTmp)}, {S(sTmp2)}',
            f's_add_u32 {S(dst)}, {S(dst)}, {S(sW8)}', f's_add_u32 {S(dst+1)}, {S(dst)}, 4096']

def kv_pre(n):
    p, i = n >> 3, n & 7
    so = 40 + 2 * (p >> 1) + (i >> 2)
    voff = vOffK + (i & 3) if p % 2 == 0 else vOffV
    srd = sK if p % 2 == 0 else sV
    return [f'buffer_load_dwordx4 {A(32*p + 4*i, 4)}, {V(voff)}, {S(srd,4)}, {S(so)} offen offset:{1024*(i&3)}{KVF}']

def spread_groups(gaps, groups, g0, g1):
    n = g1 - g0 + 1
    for k, g in enumerate(groups):
        gaps[g0 + (k * n) // len(groups)].extend(g)

lab_n = [0]
def lab(p='L'):
    lab_n[0] += 1
    return f'{p}{lab_n[0]}'

def qstages(order, first):
    Wf = lambda ks, d: 144 + ks * 8 + d * 4
    Xf = lambda ks, qb: 176 + ks * 12 + qb * 4
    def reads(j, ks):
        b = j % 4; hi = b >> 1; off = (b & 1) * 40960
        r = [f'ds_read_b64_tr_b16 {V(Wf(ks,d) + 2*wp, 2)}, {V(vWA + 2*hi + d)} offset:{off + 4096*ks + 1024*wp}' for d in range(2) for wp in range(2)]
        return r + [f'ds_read_b128 {V(Xf(ks,qb), 4)}, {V(vXA + 4*hi + ks)} offset:{off + 4096*qb}' for qb in range(3)]
    D = lambda m: [(m, g) for g in stage_dma(m)]
    KV = [(-1 - (n >> 3), kv_pre(n)) for n in range(32)]
    H = [[] for _ in range(20)]
    pro = D(0) + D(1)
    if order == 'mid':
        H[0], H[1] = D(2), D(3)
        for k in range(4): H[2 + k] = KV[8*k:8*k+8]
        for m in range(4, 10): H[m + 2] = D(m)
    else:
        H[0], H[1] = D(2), D(3)
        for m in range(4, 10): H[2*m-6], H[2*m-5] = D(m)[:5], D(m)[5:]
        if order == 'first': pro = KV + pro
        elif order == 'late':
            for k in range(6): H[14 + k] = KV[(32*k)//6:(32*(k+1))//6]
        else:
            h0 = int(order[1:])
            for m in range(4, 10): H[2*m-6], H[2*m-5] = [], []
            for m in range(4, 10): H[2*m-7] = H[2*m-7] + D(m)[:5]; H[2*m-6] = D(m)[5:]
            for k in range(4): H[h0 + k] = H[h0 + k] + KV[8*k:8*k+8]
    seq = []
    def wait(m):
        last = max(i for i, t in enumerate(seq) if t == m)
        return min(63, len(seq) - 1 - last)
    L = []
    for t, g in pro: L += g; seq.append(t)
    sn = stamp_n[0]
    L += [f's_waitcnt vmcnt({wait(0)}) lgkmcnt(0)', 's_barrier']
    if OPT['stamps'] == 1: L += stamp() + ['s_waitcnt lgkmcnt(0)']
    L += reads(0, 0) + reads(0, 1)
    for j in range(10):
        mf = []; gaps = [[] for _ in range(24)]
        for ks in range(4):
            for d in range(2):
                for qb in range(3):
                    acc = V(48 + (d * 3 + qb) * 16, 16)
                    c = '0' if (j == 0 and ks == 0) else acc
                    mf.append(f'{MF} {acc}, {V(Wf(ks,d),4)}, {V(Xf(ks,qb),4)}, {c}')
        spread(gaps, reads(j, 2), 0, 3); spread(gaps, reads(j, 3), 4, 7)
        gaps[3].append('s_waitcnt lgkmcnt(7)')
        if H[2*j]: spread_groups(gaps, [g for t, g in H[2*j]], 0, 10)
        seq += [t for t, g in H[2*j]]
        gaps[11] += [f's_waitcnt vmcnt({wait(j+1)}) lgkmcnt(0)' if j < 9 else 's_waitcnt lgkmcnt(0)', 's_barrier']
        if j == 9 and OPT['stamps'] == 1: gaps[11] += stamp()
        if j < 9: spread(gaps, reads(j + 1, 0) + reads(j + 1, 1), 12, 19)
        else:
            gaps[10].append(f'v_add_u32 {V(vAd+3)}, {S(sM0K)}, {V(vL16)}')
            gaps[12].append(f's_waitcnt vmcnt({wait(-1)})'); spread(gaps, flush(0), 12, 19)
            spread(gaps, soff_calc(sSo, 2) + [f'v_mov_b32 v16, {CSCALE}', f'v_mov_b32 v17, {CSCALE}', f'v_add_u32 v18, {S(sQw)}, {V(vL16)}',
                   f'v_add_u32 v19, {S(sQs)}, v18', f'v_add_u32 v20, {S(sQs)}, v19'], 20, 22)
        if H[2*j+1]: spread_groups(gaps, [g for t, g in H[2*j+1]], 12, 22)
        seq += [t for t, g in H[2*j+1]]
        L += weave(mf, gaps, ['s_waitcnt lgkmcnt(7)'])
    L += k_reads()
    kg = dma_groups(False)
    for k in range(6):
        d, qb = k // 3, k % 3
        a0 = 48 + k * 16; t0 = 176 + k * 8
        for i in range(8): L.append(f'v_pk_mul_f32 {V(a0+2*i,2)}, {V(a0+2*i,2)}, {V(16,2)}')
        if k == 0: L.append('s_waitcnt lgkmcnt(0)')
        if k < 4: L += kg[2*k]
        for i in range(8): L.append(f'v_cvt_pk_bf16_f32 {V(t0+i)}, {V(a0+2*i)}, {V(a0+2*i+1)}')
        if k < 4: L += kg[2*k+1]
        for u in range(2): L.append(f'ds_write_b128 {V(18+qb)}, {V(t0+4*u,4)} offset:{(2*d + u)*1024}')
    seq += [99] * 8
    L += [f's_waitcnt vmcnt({wait(-2)})'] + flush(1) + ['s_waitcnt lgkmcnt(8)', 's_barrier']
    L += [f'v_add_u32 {V(vAd)}, 0x10000, {V(vL16)}']
    for qb in range(3):
        for s in range(8):
            L.append(f'ds_read_b128 {Qreg(qb,s)}, {V(vAd if qb == 2 else vL16)} offset:{(qb&1)*32768 + LDS_Q1 + s*1024}')
    L += [f's_waitcnt vmcnt({wait(-3)})'] + flush(2)
    if first: stamp_n[0] = sn
    return L

def k1_qproj():
    L = []
    L += soff_calc(40, 0) + soff_calc(42, 1)
    if OPT['qrot']:
        L += [f's_mul_i32 {S(sCh)}, {S(sBp)}, 5', f's_add_u32 {S(sCh)}, {S(sCh)}, 1', f's_lshr_b32 {S(sCh)}, {S(sCh)}, 1',
              f's_and_b32 {S(sTmp)}, {S(sH)}, 7', f's_add_u32 {S(sCh)}, {S(sCh)}, {S(sTmp)}',
              f's_sub_u32 {S(sTmp)}, {S(sCh)}, 10', f's_cmp_ge_u32 {S(sCh)}, 10', f's_cselect_b32 {S(sCh)}, {S(sTmp)}, {S(sCh)}']
    else:
        L += [f's_mov_b32 {S(sCh)}, 0']
    L += [f's_lshl_b32 {S(sCw)}, {S(sCh)}, 19', f's_add_u32 {S(sCw)}, {S(sCw)}, {S(sWb)}',
          f's_lshl_b32 {S(sCx)}, {S(sCh)}, 7', f's_add_u32 {S(sCx)}, {S(sCx)}, {S(sXb)}']
    if OPT['grp'] == 0: L += [f's_cmp_lt_u32 {S(sBp)}, {OPT["nA"]}']
    elif OPT['grp'] == 1: L += [f's_add_u32 {S(sTmp)}, {S(sBp)}, {S(sH)}', f's_bitcmp0_b32 {S(sTmp)}, 0']
    else: L += [f's_add_u32 {S(sTmp)}, {S(sBp)}, {S(sH)}', f's_and_b32 {S(sTmp)}, {S(sTmp)}, {OPT["grp"]-1}', f's_cmp_lt_u32 {S(sTmp)}, {OPT["nA"]}']
    L += ['s_cbranch_scc1 QA'] + qstages(OPT['ordB'], 1) + ['s_branch QEND', 'QA:'] + qstages(OPT['ordA'], 0) + ['QEND:']
    return L

def read_q(base):
    L = [f'v_add_u32 {V(vAd)}, {base}, {V(vL16)}']
    for qb in range(3):
        for s in range(8):
            L.append(f'ds_read_b128 {Qreg(qb,s)}, {V(vAd)} offset:{(qb*8+s)*1024}')
    return L

def flush(p):
    return [f'ds_write_b128 {V(vAd+3)}, {A(32*p + 4*i, 4)} offset:{8192*p + 1024*i}' for i in range(8)]

def dma_groups(isV):
    G = []
    srd = sV if isV else sK
    for i in range(8):
        g = []
        if i % 4 == 0 and not isV:
            g += [f's_add_u32 m0, {S(sM0K)}, {4096*(i>>2)}', 's_nop 0']
        if i % 4 == 0 and isV:
            g += [f's_add_u32 {S(sTmp)}, {S(sM0K)}, {8192 + 4096*(i>>2)}', f's_and_b32 {S(sTmp2)}, {S(sT)}, 7', f's_cmp_eq_u32 {S(sTmp2)}, 7',
                  f's_cselect_b32 m0, {LDS_DUMMY}, {S(sTmp)}', f's_cselect_b32 {S(sSo + (i>>2))}, 0x7fff0000, {S(sSo + (i>>2))}']
        voff = vOffV if isV else vOffK + (i & 3)
        g.append(f'buffer_load_dwordx4 {V(voff)}, {S(srd,4)}, {S(sSo + (i>>2))} offen offset:{1024*(i&3)}{KVF} lds')
        G.append(g)
    return G

def exp_block(qb):
    s0 = vS + 16 * qb; p0 = vP + 8 * qb
    L = []
    for i in range(16 + 2):
        if i < 16: L.append(f'v_exp_f32 {V(vE + (i & 7))}, {V(s0 + i)}')
        j = i - 2
        if j >= 0:
            e = V(vE + (j & 7))
            if j == 1: L.append(f'v_add_f32 {V(vTs)}, {V(vE)}, {e}')
            elif j > 1: L.append(f'v_add_f32 {V(vTs)}, {V(vTs)}, {e}')
            if j & 1: L.append(f'v_cvt_pk_bf16_f32 {V(p0 + (j >> 1))}, {V(vE + ((j-1) & 7))}, {e}')
    return L

def max_block(qb, m, t):
    s0 = vS + 16 * qb
    L = [f'v_max3_f32 {V(m)}, {V(s0)}, {V(s0+1)}, {V(s0+2)}', f'v_max3_f32 {V(t)}, {V(s0+3)}, {V(s0+4)}, {V(s0+5)}']
    for k in range(6, 14, 4):
        L += [f'v_max3_f32 {V(m)}, {V(m)}, {V(s0+k)}, {V(s0+k+1)}', f'v_max3_f32 {V(t)}, {V(t)}, {V(s0+k+2)}, {V(s0+k+3)}']
    L += [f'v_max3_f32 {V(m)}, {V(m)}, {V(s0+14)}, {V(s0+15)}', f'v_max_f32 {V(m)}, {V(m)}, {V(t)}', f'v_mov_b32 {V(t)}, {V(m)}',
          's_nop 1', f'v_permlane32_swap_b32 {V(m)}, {V(t)}', 's_nop 0', f'v_max_f32 {V(m)}, {V(m)}, {V(t)}']
    return L

def sm_stream(qb, first, tag):
    s0 = vS + 16 * qb; n0 = vN + 16 * qb
    if first:
        L = [f'v_mov_b32 {V(n0+i)}, 0' for i in range(16)] + exp_block(qb)
        L += [f'v_subrev_u32 {V(vE)}, {f32(2.0**-30)}, {V(vTs)}', f'v_cmp_lt_u32 vcc, {60 << 23}, {V(vE)}',
              f's_cbranch_vccnz FSLOW{qb}{first}', f'FBACK{qb}{first}:', f'v_mov_b32 {V(vL+qb)}, {V(vTs)}']
        return L
    L = exp_block(qb)
    L += [f'v_cmp_lt_f32 vcc, {S(sThr)}, {V(vTs)}', f's_cbranch_vccnz SLOW{qb}{tag}', f'BACK{qb}{tag}:',
          f'v_add_f32 {V(vL+qb)}, {V(vL+qb)}, {V(vTs)}']
    return L

def fslow(qb, first):
    s0 = vS + 16 * qb; n0 = vN + 16 * qb
    m, t = vE, vE + 1
    L = [f'FSLOW{qb}{first}:', 's_nop 7', 's_nop 7'] + max_block(qb, m, t)
    for i in range(16): L.append(f'v_sub_f32 {V(s0+i)}, {V(s0+i)}, {V(m)}')
    for i in range(16): L.append(f'v_sub_f32 {V(n0+i)}, 0, {V(m)}')
    return L + exp_block(qb) + ['s_nop 3', f's_branch FBACK{qb}{first}']

def slow_path(qb, tag=''):
    s0 = vS + 16 * qb; n0 = vN + 16 * qb
    m, t, sc = vE, vE + 1, vE + 2
    L = [f'SLOW{qb}{tag}:', 's_nop 7', 's_nop 7']
    L += max_block(qb, m, t)
    L += [f'v_max_f32 {V(m)}, 0, {V(m)}', f'v_exp_f32 {V(sc)}, -{V(m)}', f'v_sub_f32 {V(t)}, {V(n0)}, {V(m)}']
    for i in range(16): L.append(f'v_mov_b32 {V(n0+i)}, {V(t)}')
    for i in range(16): L.append(f'v_sub_f32 {V(s0+i)}, {V(s0+i)}, {V(m)}')
    L.append(f'v_mul_f32 {V(vL+qb)}, {V(vL+qb)}, {V(sc)}')
    for a in range(4):
        for i in range(0, 16, 4):
            o = Oacc(a, qb) + i
            for k in range(4): L.append(f'v_accvgpr_read_b32 {V(vE+4+k)}, {A(o+k)}')
            for k in range(4): L.append(f'v_mul_f32 {V(vE+4+k)}, {V(vE+4+k)}, {V(sc)}')
            for k in range(4): L.append(f'v_accvgpr_write_b32 {A(o+k)}, {V(vE+4+k)}')
    L += exp_block(qb)
    L += ['s_nop 3', f's_branch BACK{qb}{tag}']
    return L

def k_reads():
    L = []
    for s in range(8):
        if s == 0: L.append(f'ds_read_b128 {V(vKf,4)}, {V(vKb)}')
        else:
            L += [f'v_xor_b32 {V(vAd + (s&1))}, {32*s}, {V(vKb)}', f'ds_read_b128 {V(vKf+4*s,4)}, {V(vAd + (s&1))}']
    L.append(f'v_xor_b32 {V(vKb)}, 0x4000, {V(vKb)}')
    return L

def v_reads():
    L = []
    for a in range(4):
        if a: L.append(f'v_xor_b32 {V(vAd + (a&1))}, {64*a}, {V(vVb)}')
        for u in range(2):
            for wp in range(2):
                ad = V(vVb) if a == 0 else V(vAd + (a&1))
                L.append(f'ds_read_b64_tr_b16 {V(vVf + (a*2+u)*4 + 2*wp, 2)}, {ad} offset:{4096*u + 2048*wp}')
    L.append(f'v_xor_b32 {V(vVb)}, 0x4000, {V(vVb)}')
    return L

def pre_tile():
    L = [f'v_add_u32 {V(vAd+3)}, {S(sM0K)}, {V(vL16)}']
    L += ['s_waitcnt vmcnt(24)'] + flush(0) + k_reads()
    L += ['s_waitcnt vmcnt(16)'] + flush(1) + ['s_waitcnt vmcnt(8)'] + flush(2) + ['s_waitcnt vmcnt(0)'] + flush(3)
    return L

def tile(first, var=0):
    mf = []
    for qb in range(3):
        for s in range(8):
            d = V(vS + 16*qb, 16)
            c = d if s else ('0' if first else V(vN + 16*qb, 16))
            mf.append(f'{MF} {d}, {V(vKf+4*s,4)}, {Qreg(qb,s)}, {c}')
    for qb in range(3):
        for a in range(4):
            for u in range(2):
                d = A(Oacc(a, qb), 16)
                c = '0' if (first and u == 0) else d
                mf.append(f'{MF} {d}, {V(vVf+(a*2+u)*4,4)}, {V(vP+8*qb+4*u,4)}, {c}')
    gaps = [[] for _ in range(48)]
    pre = ['s_waitcnt lgkmcnt(0)']
    t0 = var == 't0'
    if t0: var = 0
    else: gaps[0] += ([] if var else soff_calc(sSo, 2)) + ['s_waitcnt vmcnt(16)']
    spread(gaps, v_reads(), 1, 8)
    kg, vg_ = dma_groups(False), dma_groups(True)
    if var: kg, vg_ = [[] for _ in range(8)], [[] for _ in range(8)]
    ep = OPT['pre'] == 14
    if var == 14 and ep: vg_ = wo_dma(0) + wo_dma(1)
    if var == 15 and ep: kg = wo_dma(2) + wo_dma(3)
    if var == 15: gaps[0][0] = f's_waitcnt vmcnt({8 if ep else 0})'
    kpos = OPT['kpos']; vpos = OPT['vpos']
    if t0:
        gaps[9] += ['s_waitcnt vmcnt(10) lgkmcnt(0)', 's_barrier']
        spread(gaps, flush(3), 10, 17)
        kpos = OPT['t0pos']; kg = vg_; vg_ = [[] for _ in range(8)]
    for i in range(8): gaps[kpos[i]] += kg[i]
    gaps[vpos[0] - 1].append('s_waitcnt lgkmcnt(0)')
    for i in range(8): gaps[vpos[i]] += vg_[i]
    sm = OPT['sm']
    for qb in range(3): spread(gaps, sm_stream(qb, first, f'_{var}' if var else ''), sm[qb][0], sm[qb][1])
    kw = OPT['kw']
    nv = sum(1 for p in vpos if p < kw)
    if var != 15:
        if not t0: gaps[kw].insert(0, f's_waitcnt vmcnt({(8 + nv * ep) if var else 16 + nv})')
        spread(gaps, k_reads(), kw, 46)
    gaps[47] += [f's_xor_b32 {S(sM0K)}, {S(sM0K)}, 0x4000', f's_add_u32 {S(sT)}, {S(sT)}, 1']
    return weave(mf, gaps, pre)

vI = 240
def ident_init():
    t, a, b = 16, 17, 18
    L = [f'v_lshrrev_b32 {V(t)}, 4, {V(vL16)}',
         f'v_bfe_u32 {V(a)}, {V(t)}, 1, 1', f'v_bfe_u32 {V(b)}, {V(t)}, 3, 2', f'v_lshl_add_u32 {V(a)}, {V(b)}, 1, {V(a)}',
         f'v_bfe_u32 {V(b)}, {V(t)}, 2, 1', f'v_bfe_u32 {V(b+1)}, {V(t)}, 5, 1', f'v_xor_b32 {V(b)}, {V(b)}, {V(b+1)}',
         f'v_lshl_add_u32 {V(a)}, {V(b)}, 4, {V(a)}',
         f'v_and_b32 {V(b)}, 1, {V(t)}', f'v_lshlrev_b32 {V(b)}, 4, {V(b)}', f'v_mov_b32 {V(b+1)}, 0x3f80', f'v_lshlrev_b32 {V(b)}, {V(b)}, {V(b+1)}']
    for i in range(8):
        L += [f'v_cmp_eq_u32 vcc, {i}, {V(a)}', 's_nop 1', f'v_cndmask_b32 {V(vI+i)}, 0, {V(b)}, vcc']
    return L

SLOWC = []
def combine():
    L = read_q(LDS_Q2) + ['s_waitcnt lgkmcnt(0)', 's_barrier', 'COMBINE:']
    for qb in range(3):
        L += [f'v_mov_b32 {V(17+2*qb)}, {V(vL+qb)}', f'v_mov_b32 {V(16+2*qb)}, {V(vN+16*qb)}', 's_nop 0',
              f'v_permlane32_swap_b32 {V(17+2*qb)}, {V(vL+qb)}', 's_nop 0',
              f'v_add_f32 {V(17+2*qb)}, {V(17+2*qb)}, {V(vL+qb)}']
    L += [f's_lshl_b32 {S(sTmp)}, {S(sWv)}, 3', f'v_add_u32 {V(vAd)}, {S(sTmp)}, {V(vStat)}']
    for qb in range(3):
        L.append(f'ds_write_b64 {V(vAd)}, {V(16+2*qb,2)} offset:{1024*qb}')
    def addr(dst, r, wr):
        a = [f's_cmp_eq_u32 {S(sT)}, 16', f's_cselect_b32 {S(sTmp)}, {0 if wr else r}, {r if wr else 0}', f's_xor_b32 {S(sTmp)}, {S(sWv)}, {S(sTmp)}']
        if r == 1: a += [f's_mul_i32 {S(sTmp)}, {S(sTmp)}, 6144', f's_add_u32 {S(sTmp)}, {S(sTmp)}, {LDS_XR}']
        else: a += [f's_lshl_b32 {S(sTmp)}, {S(sTmp)}, 15']
        return a + [f'v_add_u32 {V(dst)}, {S(sTmp)}, {V(vL16)}']
    roff = {1: 0, 2: 0, 3: 24576}
    for k in range(9):
        r, qb = 1 + k // 3, k % 3; b = 24 + 16 * (k & 1); pk = 72 + 8 * k
        if qb == 0: L += addr(vAd + r, r, 1)
        for i in range(16): L.append(f'v_accvgpr_read_b32 {V(b+i)}, {A(Oacc(r,qb)+i)}')
        for i in range(8): L.append(f'v_cvt_pk_bf16_f32 {V(pk+i)}, {V(b+2*i)}, {V(b+2*i+1)}')
        for u in range(2): L.append(f'ds_write_b128 {V(vAd+r)}, {V(pk+4*u,4)} offset:{roff[r] + (qb*2+u)*1024}')
        if k == OPT['wdk'] and OPT['pre'] in (2, 4): L += [f's_cmp_eq_u32 {S(sT)}, 16', 's_cbranch_scc0 CP1'] + wd(0) + wd(1) + ['CP1:']
    for qb in range(3):
        for i in range(16): L.append(f'v_accvgpr_read_b32 {V(24+16*qb+i)}, {A(Oacc(0,qb)+i)}')
    for r in range(1, 4): L += addr(202 + r, r, 0) + [f'v_xor_b32 {V(199+r)}, {8*r}, {V(vAd)}']
    L += st2() + ['s_waitcnt lgkmcnt(0)', 's_barrier'] + st2(1)
    if OPT['pre'] == 4: L += [f's_cmp_eq_u32 {S(sT)}, 16', 's_cbranch_scc0 CP2'] + wd(2) + wd(3) + ['CP2:']
    sn = lambda qb, r: (16 + 2*qb) if r == 0 else 176 + qb*6 + (r-1)*2
    for qb in range(3):
        for r in range(1, 4): L.append(f'ds_read_b64 {V(sn(qb,r),2)}, {V(199+r)} offset:{1024*qb}')
    rds = []; mfs = []; src = []
    for r in range(1, 4):
        for u in range(2):
            for qb in range(3):
                d = 72 + len(rds) * 4; src.append((d, r, qb))
                rds.append(f'ds_read_b128 {V(d,4)}, {V(202+r)} offset:{roff[r] + (qb*2+u)*1024}')
                mfs.append(f'{MF} {V(24+16*qb,16)}, {V(vI+4*u,4)}, {V(d,4)}, {V(24+16*qb,16)}')
    L += rds[:6] + ['s_waitcnt lgkmcnt(6)'] + rds[6:12]
    for qb in range(3):
        for r in range(1, 4): L.append(f'v_xor_b32 {V(193+r)}, {V(sn(qb,r))}, {V(sn(qb,0))}')
        L.append(f'v_or3_b32 {V(8+qb)}, v194, v195, v196')
    L += ['v_or3_b32 v8, v8, v9, v10', 'v_cmp_ne_u32 vcc, 0, v8', 's_cbranch_vccnz SLOWC']
    lm = []
    for qb in range(3):
        lm.append([f'v_add_f32 {V(sn(qb,0)+1)}, {V(sn(qb,0)+1)}, {V(sn(qb,1)+1)}', f'v_add_f32 {V(sn(qb,2)+1)}, {V(sn(qb,2)+1)}, {V(sn(qb,3)+1)}',
                   f'v_add_f32 {V(sn(qb,0)+1)}, {V(sn(qb,0)+1)}, {V(sn(qb,2)+1)}', f'v_rcp_f32 {V(sn(qb,0))}, {V(sn(qb,0)+1)}'])
    for k in range(18):
        if k < 6: L += [rds[12+k], 's_waitcnt lgkmcnt(12)']
        else: L += [f's_waitcnt lgkmcnt({17-k})']
        L.append(mfs[k])
        if 6 <= k < 9: L += lm[k-6]
    L += ['CFIN:']
    Z = ['SLOWC:'] + rds[12:15] + ['s_waitcnt lgkmcnt(0)'] + rds[15:]
    for qb in range(3):
        n = lambda r: V(sn(qb, r)); l = lambda r: V(sn(qb, r) + 1)
        Z += [f'v_min3_f32 v22, {n(0)}, {n(1)}, {n(2)}', f'v_min_f32 v22, v22, {n(3)}']
        for r in range(4): Z.append(f'v_sub_f32 {n(r)}, v22, {n(r)}')
        for r in range(4): Z.append(f'v_exp_f32 {n(r)}, {n(r)}')
        Z.append('s_nop 0')
        for r in range(4): Z.append(f'v_mul_f32 {l(r)}, {l(r)}, {n(r)}')
        for i in range(16): Z.append(f'v_mul_f32 {V(24+16*qb+i)}, {V(24+16*qb+i)}, {n(0)}')
    Z.append('s_waitcnt lgkmcnt(0)')
    for d, r, qb in src:
        for i in range(4):
            Z += [f'v_lshlrev_b32 v22, 16, {V(d+i)}', f'v_and_b32 v23, 0xffff0000, {V(d+i)}', f'v_mul_f32 v22, v22, {V(sn(qb,r))}',
                  f'v_mul_f32 v23, v23, {V(sn(qb,r))}', f'v_cvt_pk_bf16_f32 {V(d+i)}, v22, v23']
    Z += sum(lm, []) + ['s_nop 1'] + mfs + ['s_branch CFIN']
    SLOWC.extend(Z)
    L += st2()
    L += [f's_cmp_eq_u32 {S(sT)}, 16', 's_cbranch_scc0 CB1', 's_nop 7', 's_nop 3', 's_branch CB2', 'CB1:']
    L += soff_calc(sSo, 1)
    for i in range(8):
        if i % 4 == 0: L += [f's_add_u32 m0, {S(sM0K)}, {24576 + 4096*(i>>2)}', 's_nop 0']
        L.append(f'buffer_load_dwordx4 {V(vOffV)}, {S(sV,4)}, {S(sSo + (i>>2))} offen offset:{1024*(i&3)}{KVF} lds')
    L += ['CB2:']
    for qb in range(3):
        for i in range(8): L.append(f'v_pk_mul_f32 {V(24+16*qb+2*i,2)}, {V(24+16*qb+2*i,2)}, {V(16+2*qb,2)} op_sel_hi:[1,0]')
        for i in range(8): L.append(f'v_cvt_pk_bf16_f32 {V(vVf+8*qb+i)}, {V(24+16*qb+2*i)}, {V(24+16*qb+2*i+1)}')
        L.append(f's_add_u32 {S(sTmp)}, {S(sOb)}, {qb*262144}')
        for u in range(2):
            L.append(f'buffer_store_dwordx4 {V(vVf+8*qb+4*u,4)}, {V(vL16)}, {S(sO,4)}, {S(sTmp)} offen offset:{1024*u}{STF}')
    L += [f's_add_u32 {S(sOb)}, {S(sOb)}, {12*262144}', 's_nop 1'] + st2()
    return L

PART_OFF = 20 << 20
sFl2, sPs = 54, 55
def advW():
    return [f's_add_u32 {S(sTmp)}, {S(sNW)}, {S(sRt)}', f's_and_b32 {S(sTmp)}, {S(sTmp)}, 15',
            f's_mul_i32 {S(sWs)}, {S(sTmp)}, 81920', f's_add_u32 {S(sWs)}, {S(sWs)}, {S(sWs0)}', f's_add_u32 {S(sNW)}, {S(sNW)}, 1']
def advO():
    return [f's_add_u32 {S(sTmp)}, {S(sNO)}, {S(sRt)}', f's_and_b32 {S(sTmp)}, {S(sTmp)}, 15',
            f's_lshl_b32 {S(sTmp)}, {S(sTmp)}, 12', f's_add_u32 {S(sOsA)}, {S(sOs0)}, {S(sTmp)}', f's_add_u32 {S(sNO)}, {S(sNO)}, 1']
slot = lambda n: 4096 * (n & 3) + 8192
def wo_dma(n):
    G = [[f's_add_u32 m0, {S(sM)}, {slot(n) + 1024*i}', f's_add_u32 {S(sTmp)}, {S(sWs)}, {i*5120}',
          f'buffer_load_dwordx4 {V(vOffW2)}, {S(sW,4)}, {S(sTmp)} offen{K2F} lds'] for i in range(4)]
    G[0] = advW() + G[0]
    return G
wd = lambda n: sum(wo_dma(n), [])

def op_setup():
    mi, ni, kq, j = sOsA, sOsB, sG, sWs
    L = [f's_mov_b32 {S(sW)}, s48', f's_and_b32 {S(sW+1)}, s49, 0xffff', f's_mov_b32 {S(sW+2)}, 5242880',
         f's_mov_b32 {S(sX)}, s50', f's_and_b32 {S(sX+1)}, s51, 0xffff', f's_mov_b32 {S(sX+2)}, 1966080',
         f's_add_u32 {S(sTag)}, {S(sGen)}, 0x9e3779b1', f's_lshl_b32 {S(sM)}, {S(sWv)}, 15',
         f's_lshr_b32 {S(j)}, s2, 3', f's_mul_i32 {S(mi)}, {S(j)}, 52', f's_lshr_b32 {S(mi)}, {S(mi)}, 8',
         f's_mul_i32 {S(ni)}, {S(mi)}, 5', f's_sub_u32 {S(ni)}, {S(j)}, {S(ni)}', f's_and_b32 {S(kq)}, s2, 3',
         f's_mul_i32 {S(sRt)}, {S(mi)}, 86', f's_lshr_b32 {S(sRt)}, {S(sRt)}, 5', f's_mul_i32 {S(sTmp)}, {S(ni)}, 103', f's_lshr_b32 {S(sTmp)}, {S(sTmp)}, 5',
         f's_add_u32 {S(sRt)}, {S(sRt)}, {S(sTmp)}', f's_mov_b32 {S(sNW)}, 0', f's_mov_b32 {S(sNO)}, 0',
         f's_mul_i32 {S(sWs0)}, {S(kq)}, 1310720', f's_mul_i32 s3, {S(sWv)}, 20480', f's_add_u32 {S(sWs0)}, {S(sWs0)}, s3',
         f's_lshl_b32 s3, {S(ni)}, 8', f's_add_u32 {S(sWs0)}, {S(sWs0)}, s3',
         f's_lshl_b32 {S(mi)}, {S(mi)}, 2', f's_add_u32 {S(mi)}, {S(mi)}, {S(sWv)}',
         f's_mul_i32 {S(sOut)}, {S(mi)}, 81920', f's_add_u32 {S(sOut)}, {S(sOut)}, s3', f's_mul_i32 s3, {S(sBr)}, 1280', f's_add_u32 {S(sOut)}, {S(sOut)}, s3',
         f's_lshl_b32 s3, {S(kq)}, 6', f's_add_u32 {S(sOut)}, {S(sOut)}, s3',
         f's_lshl_b32 {S(sOs0)}, {S(mi)}, 18', f's_lshl_b32 s3, {S(kq)}, 16', f's_add_u32 {S(sOs0)}, {S(sOs0)}, s3',
         f's_lshl_b32 s3, {S(sBr)}, 15', f's_lshl_b32 {S(sTmp)}, {S(kq)}, 10', f's_add_u32 s3, s3, {S(sTmp)}',
         f's_lshl_b32 {S(sFlg)}, {S(sBp)}, 12', f's_add_u32 {S(sFlg)}, {S(sFlg)}, s3',
         f's_and_b32 {S(sTmp)}, {S(sH)}, 7', f's_lshl_b32 {S(sTmp)}, {S(sTmp)}, 2', f's_add_u32 {S(sFlg)}, {S(sFlg)}, {S(sTmp)}',
         f's_mul_i32 {S(sPoll)}, {S(mi)}, 43', f's_lshr_b32 {S(sPoll)}, {S(sPoll)}, 7', f's_lshl_b32 {S(sPoll)}, {S(sPoll)}, 12', f's_lshl_b32 {S(sTmp)}, {S(ni)}, 7', f's_add_u32 {S(sPoll)}, {S(sPoll)}, {S(sTmp)}',
         f's_add_u32 {S(sPoll)}, {S(sPoll)}, s3',
         f's_lshl_b32 s3, {S(sBr)}, 5', f's_add_u32 s3, s3, {S(j)}', f's_lshl_b32 {S(sFl2)}, s3, 11', f's_lshl_b32 {S(sTmp)}, {S(kq)}, 2',
         f's_add_u32 {S(sFl2)}, {S(sFl2)}, {S(sTmp)}', f's_add_u32 {S(sFl2)}, {S(sFl2)}, 65536', f's_lshl_b32 {S(sTmp)}, {S(sWv)}, 9', f's_add_u32 {S(sFl2)}, {S(sFl2)}, {S(sTmp)}',
         f's_mul_i32 {S(sPs)}, s3, 196608', f's_lshl_b32 s3, {S(sWv)}, 12', f's_add_u32 {S(sPs)}, {S(sPs)}, s3',
         f'v_lshrrev_b32 v17, 8, {V(vL16)}', 'v_lshlrev_b32 v16, 6, v17', f'v_and_b32 v18, 0xf0, {V(vL16)}', 'v_xor_b32 v16, v16, v18',
         'v_mul_u32_u24 v17, 0x500, v17', f'v_add_u32 {V(vOffW2)}, v16, v17',
         f'v_lshlrev_b32 v253, 3, {V(vL16)}', f'v_mov_b32 v252, {S(sTag)}', 'v_and_b32 v16, 0x400, v253', 'v_mad_u32_u24 v16, v16, 15, v253',
         f'v_mov_b32 v17, {S(sGen)}', f'v_mov_b32 v18, {LDS_CNT}', 'v_mov_b32 v19, 0', f's_lshl_b32 {S(sTmp)}, {S(sWv)}, 2', f's_lshl_b64 exec, 15, {S(sTmp)}',
         f'buffer_store_dword v17, v16, {S(sF,4)}, {S(sFlg)} offen sc1', 's_mov_b64 exec, 15', f'buffer_store_dword v17, v253, {S(sF,4)}, {S(sFl2)} offen sc1',
         'ds_write_b32 v18, v19', 's_mov_b64 exec, -1', 's_nop 1']
    return L

def publish(last, tag, so, t=16):
    return [f'v_mov_b32 {V(t)}, {LDS_CNT}', f'v_mov_b32 {V(t+1)}, 1', 's_mov_b64 exec, 1', f'ds_add_rtn_u32 {V(t+2)}, {V(t)}, {V(t+1)}',
            's_waitcnt lgkmcnt(0)', f'v_cmp_eq_u32 vcc, {last}, {V(t+2)}',
            f's_cbranch_vccz {tag}', 's_mov_b64 exec, 63', f'buffer_store_dword v252, v253, {S(sF,4)}, {S(so)} offen sc1', f'{tag}:', 's_mov_b64 exec, -1',
            f's_add_u32 {S(sFlg)}, {S(sFlg)}, 16384', 's_nop 0']

def delay(tag, d=None):
    d = OPT['dly'] if d is None else d
    if not d: return []
    return [f's_mov_b32 {S(sTmp2)}, {d}', f'{tag}W:', 's_nop 15', f's_sub_u32 {S(sTmp2)}, {S(sTmp2)}, 1', f's_cbranch_scc0 {tag}W']
def poll(tag, pl, first=True, d=None):
    L = [f's_mov_b32 {S(sG)}, {SPIN}', f's_branch {tag}{"B" if first else "C"}', f'{tag}:'] + delay(tag, d)
    return L + [f'{tag}B:', pl, f's_sub_u32 {S(sG)}, {S(sG)}, 1', f's_cbranch_scc1 {tag}D', f'{tag}C:', 's_waitcnt vmcnt(0)',
                f'v_cmp_ne_u32 vcc, {S(sTag)}, v1', f's_cbranch_vccnz {tag}', f'{tag}D:']

def oproj():
    vRd, vPo, vOa, vP2, vOf, vWf = 2, 10, 11, 15, 24, 88
    pl = f'buffer_load_dword v1, {V(vPo)}, {S(sF,4)}, {S(sPoll)} offen sc1'
    L = [f'v_lshrrev_b32 v21, 4, {V(vL16)}', 'v_and_b32 v13, 7, v21', f'v_lshlrev_b32 {V(vPo)}, 2, v13', pl,
         'v_lshrrev_b32 v12, 5, v21', 'v_bfe_u32 v13, v21, 2, 2', 'v_lshlrev_b32 v14, 3, v12', 'v_add_u32 v14, v14, v13',
         'v_lshlrev_b32 v14, 8, v14', f's_and_b32 {S(sTmp)}, s2, 3', f'v_xor_b32 v13, {S(sTmp)}, v13',
         'v_lshlrev_b32 v13, 6, v13', 'v_add_u32 v14, v14, v13',
         'v_and_b32 v13, 16, v21', 'v_lshlrev_b32 v13, 1, v13', 'v_add_u32 v14, v14, v13',
         'v_and_b32 v13, 1, v21', 'v_lshlrev_b32 v13, 4, v13', 'v_add_u32 v14, v14, v13',
         'v_and_b32 v13, 2, v21', 'v_lshlrev_b32 v13, 2, v13', f'v_add_u32 {V(vRd)}, v14, v13']
    for a in range(1, 4): L.append(f'v_xor_b32 {V(vRd+a)}, {64*a}, {V(vRd)}')
    for a in range(4): L.append(f'v_add_u32 {V(vRd+4+a)}, 0x10000, {V(vRd+a)}')
    L += ['v_and_b32 v13, 31, v21', 'v_mul_u32_u24 v13, 0xa00, v13', 'v_lshlrev_b32 v12, 4, v12', f'v_add_u32 {V(vOa)}, v12, v13',
          'v_and_b32 v13, 3, v21', 'v_max_u32 v13, 1, v13', f'v_xor_b32 v13, {S(sTmp)}, v13', f'v_lshlrev_b32 {V(vP2)}, 2, v13',
          f's_add_u32 {S(sK)}, {S(sF)}, {PART_OFF - FLAG_OFF}', f's_addc_u32 {S(sK+1)}, {S(sF+1)}, 0', f's_mov_b32 {S(sK+2)}, {64*196608}']
    for i in range(64): L.append(f'v_accvgpr_write_b32 {A(i)}, 0')
    L += ['s_waitcnt vmcnt(1)'] + publish(7, 'PUB2', sFlg) + stamp()
    L += ['s_cmp_ge_u32 s2, 240', 's_cbranch_scc1 NOTILE']
    def wreads(n):
        return [f'ds_read_b64_tr_b16 {V(vWf + 64*(n&1) + (ks*4+a)*4 + 2*wp, 2)}, {V(vRd + 4*(ks>>1) + a)} offset:{slot(n) + 32768*(ks&1) + 1024*wp}'
                for ks in range(4) for a in (1, 2, 3, 0) for wp in range(2)]
    def oloads(n):
        G = [[f'buffer_load_dwordx4 {V(vOf + 16*(n&3) + 4*ks, 4)}, {V(vL16)}, {S(sO,4)}, {S(sOsA)} offen offset:{1024*ks}{fl("oflag")}'] for ks in range(4)]
        G[0] = advO() + G[0]
        return G
    ol = lambda n: sum(oloads(n), [])
    pre = OPT['pre']
    for n in range(pre, 2): L += wd(n)
    L += poll('POLL', pl, False)
    L += ol(0) + (wd(2) if pre < 3 else []) + ol(1) + (wd(3) if pre < 4 else []) + ol(2)
    L += [f's_waitcnt vmcnt({24 if pre < 3 else 4})', 's_barrier'] + wreads(0) + stamp()
    def body(n, w, o, wait):
        mf = [f'{MF} {A(a*16,16)}, {V(vWf+64*(n&1)+(ks*4+a)*4,4)}, {V(vOf+16*(n&3)+4*ks,4)}, {A(a*16,16)}' for ks in range(4) for a in (1, 2, 3, 0)]
        gaps = [[] for _ in range(16)]
        if n != 15: spread(gaps, wreads(n + 1), 0, OPT['wrend'])
        G = (wo_dma(n) if w else []) + (oloads(n + 3) if o else [])
        if G: spread_groups(gaps, G, 0, 15)
        return weave(mf, gaps, [f's_waitcnt vmcnt({wait}) lgkmcnt(0)'] + (['s_barrier'] if n != 15 else []))
    L += [f's_mov_b32 {S(sG)}, 0', 'OP_LOOP:']
    for b in range(4): L += body(b, True, True, 16)
    L += [f's_add_u32 {S(sG)}, {S(sG)}, 1', f's_cmp_lt_u32 {S(sG)}, 3', 's_cbranch_scc1 OP_LOOP']
    L += body(12, False, True, 16) + body(13, False, False, 12) + body(14, False, False, 4) + body(15, False, False, 0)
    L += stamp() + ['s_and_b32 s3, s2, 3']
    for a in range(1, 4):
        L += [f's_xor_b32 {S(sTmp)}, s3, {a}', f's_mul_i32 {S(sTmp)}, {S(sTmp)}, 49152', f's_add_u32 {S(sTmp)}, {S(sTmp)}, {S(sPs)}',
              f's_add_u32 {S(sTmp)}, {S(sTmp)}, {(a-1)*16384}']
        b = 88 + 16 * a
        for i in range(16): L.append(f'v_accvgpr_read_b32 {V(b+i)}, {A(a*16+i)}')
        for i in range(8): L.append(f'v_cvt_pk_bf16_f32 {V(b+i)}, {V(b+2*i)}, {V(b+2*i+1)}')
        for u in range(2): L.append(f'buffer_store_dwordx4 {V(b+4*u,4)}, {V(vL16)}, {S(sK,4)}, {S(sTmp)} offen offset:{1024*u} sc1')
    L += [f's_mul_i32 {S(sPoll)}, s3, 124', f's_add_u32 {S(sPoll)}, {S(sPoll)}, {S(sFl2)}', 's_mul_i32 s3, s3, 49152', f's_add_u32 {S(sPs)}, {S(sPs)}, s3']
    pl2 = f'buffer_load_dword v1, {V(vP2)}, {S(sF,4)}, {S(sPoll)} offen sc1'
    L += [pl2, 's_waitcnt vmcnt(1)'] + ['s_mov_b64 exec, 15', f'buffer_store_dword v252, v253, {S(sF,4)}, {S(sFl2)} offen sc1', 's_mov_b64 exec, -1', 's_nop 0'] + stamp()
    L += ['s_waitcnt vmcnt(1)', f'v_cmp_ne_u32 vcc, {S(sTag)}, v1', 's_cbranch_vccz POLMD'] + poll('POLM', pl2, True, OPT['dl2']) + stamp()
    for a in range(3):
        if a: L.append(f's_add_u32 {S(sPs)}, {S(sPs)}, 16384')
        for u in range(2): L.append(f'buffer_load_dwordx4 {V(40+8*a+4*u,4)}, {V(vL16)}, {S(sK,4)}, {S(sPs)} offen offset:{1024*u} sc1')
    for k in range(6):
        L += [f's_waitcnt vmcnt({5-k})', f'{MF} {A(0,16)}, {V(vI+4*(k&1),4)}, {V(40+4*k,4)}, {A(0,16)}']
    L += ['s_nop 7', 's_nop 3']
    for i in range(16): L.append(f'v_accvgpr_read_b32 {V(24+i)}, {A(i)}')
    for i in range(8): L.append(f'v_cvt_pk_bf16_f32 {V(88+i)}, {V(24+2*i)}, {V(25+2*i)}')
    for u in range(2): L.append(f'buffer_store_dwordx4 {V(88+4*u,4)}, {V(vOa)}, {S(sX,4)}, {S(sOut)} offen offset:{32*u}{fl("outflag")}')
    L += ['s_branch K1_FIN', 'NOTILE:', 's_cmp_eq_u32 s2, 255', 's_cbranch_scc0 K1_FIN', f's_cmp_eq_u32 {S(sWv)}, 0', 's_cbranch_scc0 K1_FIN']
    L += [f's_mov_b32 {S(sG)}, {SPIN}', f'v_lshlrev_b32 v24, 6, {V(vL16)}', 'GPOLL:'] + delay('GD') + [f'buffer_load_dwordx4 v[16:19], v24, {S(sF,4)}, 0 offen offset:640 sc1',
          f'buffer_load_dwordx4 v[20:23], v24, {S(sF,4)}, 0 offen offset:656 sc1', f's_sub_u32 {S(sG)}, {S(sG)}, 1',
          's_cbranch_scc1 GDONE', 's_waitcnt vmcnt(0)']
    for i in range(8): L.append(f'v_xor_b32 {V(16+i)}, {S(sTag)}, {V(16+i)}')
    L += ['v_or3_b32 v16, v16, v17, v18', 'v_or3_b32 v19, v19, v20, v21', 'v_or3_b32 v16, v16, v22, v23', 'v_or_b32 v16, v16, v19',
          'v_cmp_ne_u32 vcc, 0, v16', 's_cbranch_vccnz GPOLL', 'GDONE:', 's_waitcnt vmcnt(0)', f'v_mov_b32 v17, {S(sTag)}', 'v_mov_b32 v16, 196608', 's_mov_b64 exec, 1',
          f'buffer_store_dword v17, v16, {S(sF,4)}, 0 offen sc1', 's_mov_b64 exec, -1', 's_branch K1_FIN']
    return L

def k1():
    L = k1_prologue()
    L += k1_qproj()
    L += stamp()
    L += op_setup() + ident_init() + tile('A', 't0')
    L += ['LOOP:'] + tile(False)
    L += [f's_cmp_eq_u32 {S(sT)}, 14', 's_cbranch_scc1 PEEL', f's_cmp_lg_u32 {S(sT)}, 8', 's_cbranch_scc1 LOOP', 's_nop 7', 's_nop 7']
    L += stamp()
    L += combine()
    L += [f's_cmp_eq_u32 {S(sT)}, 16', 's_cbranch_scc1 OPROJ']
    L += stamp()
    L += tile('B') + ['s_waitcnt vmcnt(16)'] + publish(3, 'PUB1', sFlg)
    L += ['s_branch LOOP']
    L += ['PEEL:'] + tile(False, 14) + tile(False, 15) + stamp() + ['s_nop 7', 's_nop 7', 's_branch COMBINE']
    L += ['OPROJ:'] + oproj()
    for tg in ('', '_14', '_15'):
        for qb in range(3): L += slow_path(qb, tg)
    for tg in 'AB':
        for qb in range(3): L += fslow(qb, tg)
    L += SLOWC
    L += ['K1_FIN:'] + stamp_dump(0, sWv, sTmp)
    L += ['K1_END:', 's_endpgm']
    return L

def emit(kname, L, nv, acc):
    out = [f'.globl {kname}', '.p2align 8', f'.type {kname},@function', f'{kname}:']
    for t in L: out.append(t if is_label(t) else '    ' + t)
    desc = ['.p2align 6', f'.amdhsa_kernel {kname}', f'  .amdhsa_next_free_vgpr {nv}', '  .amdhsa_next_free_sgpr 102',
            f'  .amdhsa_accum_offset {acc}', '  .amdhsa_group_segment_fixed_size 0', '  .amdhsa_kernarg_size 104',
            '  .amdhsa_user_sgpr_count 2', '  .amdhsa_user_sgpr_kernarg_segment_ptr 1', '  .amdhsa_system_sgpr_workgroup_id_x 1',
            '.end_amdhsa_kernel']
    return out, desc

def main():
    a = k1()
    bad = check_seq(code_only(a), 'k1')
    k1n = NAME + '_kernel'
    hdr = ['; @launch grid=(256,1,1) block=(256,1,1) lds=163840', '.amdgcn_target "amdgcn-amd-amdhsa--gfx950"', '.text']
    c1, d1 = emit(k1n, a, 512, 256)
    txt = '\n'.join(hdr + c1 + ['.section .rodata,"a"'] + d1) + '\n'
    open(sys.argv[1], 'w').write(txt)
    print('hazards', bad, 'lines', len(a), 'stamps', stamp_n[0])
main()
```
